```python
import torch

def _softmax(x, axis=-1):
    return torch.softmax(x, dim=axis)

def _gelu(x):
    return torch.nn.functional.gelu(x, approximate='tanh')

def _silu(x):
    return torch.nn.functional.silu(x)

def _sigmoid(x):
    return torch.sigmoid(x)

def _layernorm(x, axis=-1, eps=1e-05):
    m = x.mean(dim=axis, keepdim=True)
    v = x.var(dim=axis, keepdim=True, unbiased=False)
    return (x - m) / torch.sqrt(v + eps)

def _scatter_add(tgt, idx, src, axis=0):
    return tgt.clone().index_add_(axis, idx, src)

def _segment_sum(src, seg, n):
    out = torch.zeros((n,) + src.shape[1:], dtype=src.dtype)
    return out.index_add_(0, seg, src)

def _pad(x, pw):
    flat = tuple((v for pair in reversed(pw) for v in pair))
    return torch.nn.functional.pad(x, flat)
kernel_name = 'concat_heads__ssm_conv_s5__memory_aug_recurrent_mem_tr__prompt'

def setup_inputs():

    _w = lambda a: (lambda t: t.to(torch.bfloat16) if t.is_floating_point() else t)(torch.as_tensor(a))

    def _A_setup():
        B, S, D = (1, 2048, 512)
        P = D
        Lambda_re = -0.5 * (lambda _x: torch.exp(torch.as_tensor(_x)))((lambda *s: torch.randn(*s, dtype=torch.bfloat16) * 0.8)(P))
        Lambda_im = (lambda *s: torch.randn(*s, dtype=torch.bfloat16) * 0.8)(P) * 1.0
        B_re = (lambda *s: torch.randn(*s, dtype=torch.bfloat16) * 0.8)(P, D) * D ** (-0.5)
        B_im = (lambda *s: torch.randn(*s, dtype=torch.bfloat16) * 0.8)(P, D) * D ** (-0.5)
        C_re = (lambda *s: torch.randn(*s, dtype=torch.bfloat16) * 0.8)(D, P) * P ** (-0.5)
        C_im = (lambda *s: torch.randn(*s, dtype=torch.bfloat16) * 0.8)(D, P) * P ** (-0.5)
        log_dt = (lambda *s: torch.randn(*s, dtype=torch.bfloat16) * 0.8)(P) * 0.3 - 2.0
        Dskip = (lambda *s: torch.randn(*s, dtype=torch.bfloat16) * 0.8)(D)
        return {'x': _w((lambda *s: torch.randn(*s, dtype=torch.bfloat16) * 0.05)(B, S, D)), 'Lambda_re': _w(Lambda_re), 'Lambda_im': _w(Lambda_im), 'B_re': _w(B_re), 'B_im': _w(B_im), 'C_re': _w(C_re), 'C_im': _w(C_im), 'log_dt': _w(log_dt), 'Dskip': _w(Dskip)}
    _A_in = _A_setup()

    def _B_setup():
        B, S, Dm = (1, 2048, 512)
        H, Dh = (32, 128)
        M, seg = (8, 32)
        seg = min(seg, S)
        S = S // seg * seg
        return {'x': _w((lambda *s: torch.randn(*s, dtype=torch.bfloat16) * 0.05)(B, S, Dm)), 'mem0': _w((lambda *s: torch.randn(*s, dtype=torch.bfloat16) * 0.8)(B, M, Dm)), 'Wq': _w((lambda *s: torch.randn(*s, dtype=torch.bfloat16) * 1.6)(Dm, H, Dh) * Dm ** (-0.5)), 'Wk': _w((lambda *s: torch.randn(*s, dtype=torch.bfloat16) * 1.6)(Dm, H, Dh) * Dm ** (-0.5)), 'Wv': _w((lambda *s: torch.randn(*s, dtype=torch.bfloat16) * 0.8)(Dm, H, Dh) * Dm ** (-0.5)), 'Wo': _w((lambda *s: torch.randn(*s, dtype=torch.bfloat16) * 0.8)(H, Dh, Dm) * (H * Dh) ** (-0.5)), 'seg_len': seg}
    _B_in = _B_setup()
    return {'A_x': _A_in['x'], 'A_Lambda_re': _A_in['Lambda_re'], 'A_Lambda_im': _A_in['Lambda_im'], 'A_B_re': _A_in['B_re'], 'A_B_im': _A_in['B_im'], 'A_C_re': _A_in['C_re'], 'A_C_im': _A_in['C_im'], 'A_log_dt': _A_in['log_dt'], 'A_Dskip': _A_in['Dskip'], 'B_x': _B_in['x'], 'B_mem0': _B_in['mem0'], 'B_Wq': _B_in['Wq'], 'B_Wk': _B_in['Wk'], 'B_Wv': _B_in['Wv'], 'B_Wo': _B_in['Wo'], 'B_seg_len': _B_in['seg_len']}

def reference(A_x, A_Lambda_re, A_Lambda_im, A_B_re, A_B_im, A_C_re, A_C_im, A_log_dt, A_Dskip, B_x, B_mem0, B_Wq, B_Wk, B_Wv, B_Wo, B_seg_len):

    def _A_ref(x, Lambda_re, Lambda_im, B_re, B_im, C_re, C_im, log_dt, Dskip):
        Bsz, L, H = x.shape
        Lam = Lambda_re + 1j * Lambda_im
        Bmat = B_re + 1j * B_im
        Cmat = C_re + 1j * C_im
        dt = torch.exp(log_dt)
        Lam_bar = torch.exp(dt * Lam)
        B_bar = ((Lam_bar - 1.0) / Lam)[:, None] * Bmat
        Bu = torch.einsum('bld,pd->blp', x + 0j, B_bar)
        h = torch.zeros_like(Bu[:, 0, :])
        hs = []
        for t in range(L):
            h = Lam_bar[None, :] * h + Bu[:, t, :]
            hs.append(h)
        hseq = torch.stack(hs, 1)
        y = 2.0 * torch.einsum('blp,dp->bld', hseq, Cmat).real + x * Dskip[None, None, :]
        return y

    def _B_ref(x, mem0, Wq, Wk, Wv, Wo, seg_len):
        B, S, Dm = x.shape
        H, Dh = (Wq.shape[1], Wq.shape[2])
        M = mem0.shape[1]
        scale = Dh ** (-0.5)
        n_seg = S // seg_len
        L = M + seg_len
        idx = torch.arange(L)
        mask = (idx[:, None] < M) | (idx[:, None] >= idx[None, :])
        mem = mem0
        outs = []
        for s in range(n_seg):
            xs = x[:, s * seg_len:(s + 1) * seg_len, :].clone()
            h = torch.concatenate([mem, xs], axis=1)
            q = torch.einsum('btd,dhe->bhte', h, Wq)
            k = torch.einsum('btd,dhe->bhte', h, Wk)
            v = torch.einsum('btd,dhe->bhte', h, Wv)
            scores = torch.einsum('bhqe,bhke->bhqk', q, k) * scale
            scores = torch.where(mask[None, None], scores, -1000000000.0)
            p = _softmax(scores, axis=-1)
            o = torch.einsum('bhqk,bhke->bhqe', p, v)
            o = torch.einsum('bhte,hed->btd', o, Wo)
            mem = o[:, :M, :].clone()
            outs.append(o[:, M:, :])
        return torch.concatenate(outs, axis=1)
    a = _A_ref(A_x, A_Lambda_re, A_Lambda_im, A_B_re, A_B_im, A_C_re, A_C_im, A_log_dt, A_Dskip)
    b = _B_ref(B_x, B_mem0, B_Wq, B_Wk, B_Wv, B_Wo, B_seg_len)
    return torch.concatenate([a, b], axis=-1)
```

```python
class Asm:
    def __init__(self):
        self.lines = []
        self.nlab = 0
        self.ds_seq = 0
        self.vm_seq = 0
    def __call__(self, s):
        for l in s.split("\n"):
            l = l.strip()
            if not l:
                continue
            self.lines.append(l if l.endswith(":") else "    " + l)
            op = l.split()[0]
            if op.startswith("ds_"):
                self.ds_seq += 1
            elif op.startswith("buffer_") or op.startswith("global_"):
                self.vm_seq += 1
    def c(self, s):
        self.lines.append("    ; " + s)
    def label(self, base="L"):
        self.nlab += 1
        return f"{base}_{self.nlab}"
    def ds_tag(self): return self.ds_seq
    def vm_tag(self): return self.vm_seq
    def wait_ds(self, tag):
        n = self.ds_seq - tag
        assert n >= 0
        self(f"s_waitcnt lgkmcnt({min(n,15)})")
    def wait_vm(self, tag):
        n = self.vm_seq - tag
        assert n >= 0
        self(f"s_waitcnt vmcnt({min(n,63)})")
    def nop(self, n):
        while n > 0:
            k = min(n, 16)
            self(f"s_nop {k-1}")
            n -= k
    def text(self):
        return "\n".join(self.lines) + "\n"

def v(a, n=1): return f"v{a}" if n == 1 else f"v[{a}:{a+n-1}]"
def a(a_, n=1): return f"a{a_}" if n == 1 else f"a[{a_}:{a_+n-1}]"
def s(a_, n=1): return f"s{a_}" if n == 1 else f"s[{a_}:{a_+n-1}]"
```

```python
from common import *
import math
L_KX, L_MEM, L_QK, L_OX, L_SEL = 0x20000, 0x24000, 0x26000, 0x27000, 0x27800
PSLOT = 0x40000
X, Y, ZN, VA, SS, VXC, VXN, WV = 4, 36, 52, 84, 92, 104, 112, 128
aW, aMEM0, aL, aKXL, aQXw, aQF0, aQF1, aOXw = 120, 121, 122, 123, 124, 125, 126, 127
gPART, gPUB, vJNK, vIDX = 0, 1, 2, 3
sS, sMEM, sPST, sPRD, sPUB, sKo, sVo, sM0, sSELLO, sSELHI = 38, 39, 40, 44, 45, 46, 47, 48, 49, 50
sQKo, sVMo = 49, 50
sTAG = 3
BITOP = sum((((i>>2&1)^(i&1))|((i>>1&1)^(i&1))) << i for i in range(8))
sC, sMASK, sSPIN, sKC, sVC, sT0, sT1, sFAST, sNEED, sFKV, sFCH = 52, 54, 56, 57, 58, 59, 60, 61, 62, 63, 51
RES_L = [0, 1, 3, 4, 5, 7]
def qk_areg(lam, T): return (RES_L.index(lam) * 4 + T) * 8
def qk_lds(lam, T): return ((0 if lam == 2 else 1) * 4 + T) * 2048
WO_A = [(0, 0), (1, 0), (2, 0), (3, 0), (3, 1), (3, 2), (3, 3), (1, 1)]
WO_L = [(2, 1), (2, 2), (2, 3), (0, 1), (0, 2), (0, 3), (1, 2), (1, 3)]
def wo_areg(pr, i): return 192 + WO_A.index((pr, i)) * 8
def wo_lds(pr, i): return 16384 + WO_L.index((pr, i)) * 2048
def wv_reg(lam, T): return WV + (lam * 2 + T) * 8
SM = "v_smfmac_f32_16x16x64_bf16"
MF = "v_mfma_f32_16x16x32_bf16"

def nstamp(k, opt, name):
    if opt.get("diag") and name in opt.get("smap", {}): stamp(k, dict(opt, stamps=range(10)), opt["smap"][name])
def stamp(k, opt, i, drain=True):
    if not opt.get("diag") or i not in opt.get("stamps", range(7)): return
    lab = k.label("L_st")
    k(f"s_cmp_lg_u32 s{sS}, {opt['diag_step']}")
    k(f"s_cbranch_scc1 {lab}")
    k(f"s_memtime s[{64+2*i}:{65+2*i}]")
    k("s_waitcnt lgkmcnt(0)")
    k(f"{lab}:")

def kv_poll(k, fail):
    loop = k.label("L_kvp")
    k(f"s_min_u32 s{sNEED}, s{sNEED}, 64")
    k(f"s_mov_b32 s{sVC}, 0")
    k(f"s_add_u32 s{sT1}, s{sFKV}, {32*256}")
    k(f"{loop}:")
    k(f"buffer_load_dword v{SS+10}, off, s[{S_WS}:{S_WS+3}], s{sFKV} sc1")
    k(f"buffer_load_dword v{SS+11}, off, s[{S_WS}:{S_WS+3}], s{sT1} sc1")
    k(f"s_add_u32 s{sVC}, s{sVC}, 1")
    k(f"s_cmp_gt_u32 s{sVC}, {SPIN_LIMIT}")
    k(f"s_cbranch_scc1 {fail}")
    k("s_waitcnt vmcnt(0)")
    k(f"v_min_u32 v{SS+10}, v{SS+10}, v{SS+11}")
    k("s_nop 0")
    k(f"v_readfirstlane_b32 s{sKC}, v{SS+10}")
    k("s_nop 3")
    k(f"s_cmp_lt_u32 s{sKC}, s{sNEED}")
    k(f"s_cbranch_scc1 {loop}")
    k(f"s_cmp_ge_u32 s{sKC}, 64")
    k(f"s_cselect_b32 s{sKC}, 128, s{sKC}")
    k(f"s_sub_u32 s{sKC}, s{sKC}, 1")

def emit_setup(k, opt, fail):
    k.c("================= chain role: setup =================")
    srd(k, S_C, P_WV, 512*8192)
    srd(k, S_D, P_WO, 32*131072)
    srd(k, S_B, P_MEM0, 8192)
    k(f"s_cmp_lt_u32 s{sW}, 2")
    k(f"s_cselect_b32 s{S_A}, s{P_WQ}, s{P_WK}")
    k(f"s_cselect_b32 s{S_A+1}, s{P_WQ+1}, s{P_WK+1}")
    k(f"s_and_b32 s{S_A+1}, s{S_A+1}, 0xffff")
    k(f"s_mov_b32 s{S_A+2}, {hex(512*8192)}")
    k(f"s_mov_b32 s{S_A+3}, 0x20000")
    k(f"s_mov_b32 s{sSELLO}, 0x05040100")
    k(f"s_mov_b32 s{sSELHI}, 0x07060302")
    cval = 128 ** -0.5 * math.log2(math.e)
    import struct
    cb = struct.unpack("<I", struct.pack("<f", cval))[0]
    k(f"s_mov_b32 s{sC}, {hex(cb)}")
    k(f"s_mov_b32 s{sC+1}, {hex(cb)}")
    k(f"s_mov_b32 s{sMASK}, 0x000f000f")
    k(f"s_mov_b32 s{sMASK+1}, 0x000f000f")
    LN, C_, G_, t0, t1, t2 = 100, 101, 102, 103, 104, 105
    k(f"v_and_b32 v{LN}, 63, v0")
    k(f"v_and_b32 v{C_}, 15, v{LN}")
    k(f"v_lshrrev_b32 v{G_}, 4, v{LN}")
    k(f"v_lshlrev_b32 v{t0}, 4, v{LN}")
    k(f"s_lshl_b32 s32, s{sW}, 15")
    k(f"v_add_u32 v{aW}, s32, v{t0}")
    k(f"s_lshl_b32 s32, s{sW}, 11")
    k(f"s_add_u32 s32, s32, {hex(L_MEM)}")
    k(f"v_add_u32 v{aMEM0}, s32, v{t0}")
    k(f"v_add_u32 v{aL}, {hex(L_KX)}, v{t0}")
    k(f"v_mov_b32 v{aKXL}, v{aL}")
    k(f"s_lshr_b32 s32, s{sW}, 1")
    k("s_lshl_b32 s32, s32, 11")
    k(f"s_and_b32 s33, s{sW}, 1")
    k("s_lshl_b32 s33, s33, 10")
    k("s_add_u32 s32, s32, s33")
    k(f"s_add_u32 s32, s32, {hex(L_QK)}")
    k(f"v_lshrrev_b32 v{t1}, 1, v{C_}")
    k(f"v_lshlrev_b32 v{t2}, 7, v{t1}")
    k(f"v_add_u32 v{aQXw}, s32, v{t2}")
    k(f"v_lshlrev_b32 v{t2}, 1, v{G_}")
    k(f"v_xor_b32 v{t2}, v{t2}, v{t1}")
    k(f"v_lshlrev_b32 v{t2}, 4, v{t2}")
    k(f"v_add_u32 v{aQXw}, v{aQXw}, v{t2}")
    k(f"v_and_b32 v{t2}, 1, v{C_}")
    k(f"v_lshlrev_b32 v{t2}, 3, v{t2}")
    k(f"v_add_u32 v{aQXw}, v{aQXw}, v{t2}")
    k(f"v_lshrrev_b32 v{t1}, 2, v{C_}")
    k(f"v_lshlrev_b32 v{t1}, 1, v{t1}")
    k(f"v_and_b32 v{t2}, 1, v{C_}")
    k(f"v_add_u32 v{t1}, v{t1}, v{t2}")
    k(f"v_xor_b32 v{t2}, v{t1}, v{G_}")
    k(f"v_lshlrev_b32 v{t2}, 4, v{t2}")
    k(f"v_lshl_add_u32 v{t2}, v{G_}, 7, v{t2}")
    k(f"v_add_u32 v{aQF0}, {hex(L_QK)}, v{t2}")
    k(f"v_xor_b32 v{aQF1}, 576, v{aQF0}")
    k(f"s_lshl_b32 s32, s{sW}, 9")
    k(f"s_add_u32 s32, s32, {hex(L_OX)}")
    k(f"v_lshlrev_b32 v{t2}, 4, v{t1}")
    k(f"v_lshl_add_u32 v{t2}, v{G_}, 7, v{t2}")
    k(f"v_add_u32 v{aOXw}, s32, v{t2}")
    k(f"v_lshrrev_b32 v{t1}, 2, v{C_}")
    k(f"v_lshlrev_b32 v{t2}, 14, v{t1}")
    k(f"v_lshl_add_u32 v{t2}, v{G_}, 11, v{t2}")
    k(f"v_lshl_add_u32 v{t1}, v{t1}, 2, v{G_}")
    k(f"v_lshlrev_b32 v{t1}, 1, v{t1}")
    k(f"v_add_u32 v{t1}, s{sJ}, v{t1}")
    k(f"v_and_b32 v{t1}, 31, v{t1}")
    k(f"v_lshl_add_u32 v{t2}, v{t1}, 6, v{t2}")
    k(f"v_and_b32 v{t1}, 3, v{C_}")
    k(f"v_lshl_add_u32 v{t2}, v{t1}, 4, v{t2}")
    k(f"s_lshl_b32 s32, s{sW}, 16")
    k(f"v_add_u32 v{gPART}, s32, v{t2}")
    k(f"v_and_b32 v{t1}, 3, v{LN}")
    k(f"v_lshlrev_b32 v{t1}, 2, v{t1}")
    k(f"v_lshl_add_u32 v{gPUB}, v{G_}, 4, v{t1}")
    k(f"v_and_b32 v{t1}, 3, v{C_}")
    k(f"v_lshrrev_b32 v{t2}, 2, v{C_}")
    k(f"v_lshl_add_u32 v{t1}, v{t1}, 2, v{t2}")
    k(f"v_and_b32 v{t2}, 1, v{t1}")
    k(f"v_lshlrev_b32 v{t2}, 4, v{t2}")
    k(f"v_mov_b32 v106, 0x3f80")
    k(f"v_lshlrev_b32 v{t2}, v{t2}, v106")
    k(f"v_lshrrev_b32 v{t1}, 1, v{t1}")
    for i in range(4):
        k(f"v_cmp_eq_u32 vcc, {i}, v{t1}")
        k("s_nop 1")
        k(f"v_cndmask_b32 v{108+i}, 0, v{t2}, vcc")
    k(f"ds_write_b128 v{aL}, v[108:111] offset:{L_SEL - L_KX}")
    k(f"v_and_b32 v{t1}, 2, v{LN}")
    k(f"v_cmp_ne_u32 vcc, 0, v{t1}")
    k(f"v_mov_b32 v{t1}, 0x44444444")
    k(f"v_mov_b32 v{t2}, 0xeeeeeeee")
    k(f"v_cndmask_b32 v{vIDX}, v{t1}, v{t2}, vcc")
    oQK, oWV, oWO, oM0 = 92, 93, 94, 95
    k(f"v_and_b32 v{t1}, 1, v{G_}")
    k(f"v_lshlrev_b32 v{t1}, 17, v{t1}")
    k(f"v_lshrrev_b32 v{t2}, 1, v{G_}")
    k(f"v_lshl_add_u32 v{t1}, v{t2}, 14, v{t1}")
    k(f"s_lshl_b32 s32, s{sJ}, 8")
    k(f"s_and_b32 s33, s{sW}, 1")
    k("s_lshl_b32 s33, s33, 7")
    k("s_add_u32 s33, s33, s32")
    k(f"v_lshl_add_u32 v{oQK}, v{C_}, 3, v{t1}")
    k(f"v_add_u32 v{oQK}, s33, v{oQK}")
    k(f"s_lshl_b32 s33, s{sW}, 6")
    k("s_add_u32 s33, s33, s32")
    k(f"v_lshl_add_u32 v{oWV}, v{C_}, 2, v{t1}")
    k(f"v_add_u32 v{oWV}, s33, v{oWV}")
    k(f"v_and_b32 v{t1}, 1, v{G_}")
    k(f"v_lshlrev_b32 v{t1}, 12, v{t1}")
    k(f"v_lshl_add_u32 v{t1}, v{t2}, 13, v{t1}")
    k(f"v_lshl_add_u32 v{oWO}, v{C_}, 4, v{t1}")
    k(f"s_lshl_b32 s32, s{sJ}, 17")
    k(f"s_lshl_b32 s33, s{sW}, 8")
    k("s_add_u32 s33, s33, s32")
    k(f"v_add_u32 v{oWO}, s33, v{oWO}")
    k(f"v_and_b32 v{t1}, 1, v{G_}")
    k(f"v_lshlrev_b32 v{t1}, 10, v{t1}")
    k(f"v_lshl_add_u32 v{t1}, v{t2}, 1, v{t1}")
    k(f"v_and_b32 v{t2}, 3, v{LN}")
    k(f"v_lshl_add_u32 v{t1}, v{t2}, 4, v{t1}")
    k(f"s_lshl_b32 s32, s{sW}, 11")
    k(f"s_lshr_b32 s33, s{sJ}, 1")
    k("s_lshl_b32 s33, s33, 6")
    k("s_add_u32 s32, s32, s33")
    k(f"s_and_b32 s33, s{sJ}, 1")
    k("s_lshl_b32 s33, s33, 2")
    k("s_add_u32 s32, s32, s33")
    k(f"v_add_u32 v{oM0}, s32, v{t1}")
    for i in range(4): k(f"v_mov_b32 v{112+i}, -1")
    k(f"v_mov_b32 v{116}, 0")
    k(f"v_lshlrev_b32 v{117}, 2, v{LN}")
    k(f"s_lshl_b32 s32, s{sJ}, 14")
    k(f"s_lshl_b32 s33, s{sW}, 12")
    k("s_add_u32 s32, s32, s33")
    k(f"s_add_u32 s33, s32, {hex(MEMB - L_KX)}")
    k(f"s_add_u32 s34, s32, {hex(PART - L_KX)}")
    for so in (33, 34):
        for i in range(4):
            k(f"buffer_store_dwordx4 v[112:115], v{aL}, s[{S_WS}:{S_WS+3}], s{so} offen offset:{i*1024} sc1")
    k("s_lshr_b32 s32, s32, 1")
    k(f"s_add_u32 s{sPRD}, s32, {hex(PART - L_KX)}")
    k(f"s_lshl_b32 s{sFCH}, s{sJ}, 8")
    k(f"s_add_u32 s{sFKV}, s{sFCH}, {hex(F_KV)}")
    k(f"s_add_u32 s{sFCH}, s{sFCH}, {hex(F_CH)}")
    k(f"buffer_store_dword v116, v117, s[{S_WS}:{S_WS+3}], s{sFCH} offen sc1")
    k(f"s_lshl_b32 s32, s{sW}, 2")
    k(f"s_add_u32 s{sFCH}, s{sFCH}, s32")
    fill_tag = k.vm_tag()
    nt = opt.get("wflags", "")
    TMP, STG = 96, 104
    k(f"s_lshl_b32 s{sT0}, s{sW}, 20")
    def rowoff(jj, p): return 32*(jj >> 2) + 8*((jj >> 1) & 1) + (jj & 1) + 4*(1 - p)
    def g_qk(lam, jq):
        def issue(base):
            k(f"s_xor_b32 s32, s{sT0}, {hex(lam << 19)}")
            for j4 in range(4):
                for p in range(2):
                    k(f"s_add_u32 s33, s32, {rowoff(jq*4+j4, p) * 8192}")
                    k(f"buffer_load_dwordx2 {v(base + j4*4 + p*2, 2)}, v{oQK}, s[{S_A}:{S_A+3}], s33 offen {nt}")
        def proc(base):
            for j4 in range(4):
                x0, x1 = base + j4*4, base + j4*4 + 2
                for T in range(4):
                    dst = TMP + T if lam in RES_L else STG + T*4 + j4
                    k(f"v_perm_b32 v{dst}, v{x1 + (T>>1)}, v{x0 + (T>>1)}, s{sSELHI if T & 1 else sSELLO}")
                if lam in RES_L:
                    for T in range(4): k(f"v_accvgpr_write_b32 a{qk_areg(lam,T)+jq*4+j4}, v{TMP+T}")
            if lam not in RES_L:
                for T in range(4): k(f"ds_write_b128 v{aW}, {v(STG + T*4, 4)} offset:{qk_lds(lam,T) + jq*1024}")
                k("s_waitcnt lgkmcnt(0)")
        return (16, issue, proc)
    def g_wo(i):
        def issue(base):
            k(f"s_lshl_b32 s32, s{sW}, 15")
            k(f"s_xor_b32 s32, s32, {hex(i << 15)}")
            for jq in range(2):
                for u in range(2):
                    for p in range(2):
                        k(f"s_add_u32 s33, s32, {(16*jq + 2*u + p) * 1024}")
                        k(f"buffer_load_dwordx4 {v(base + (jq*2+u)*8 + p*4, 4)}, v{oWO}, s[{S_D}:{S_D+3}], s33 offen {nt}")
        def proc(base):
            for pr in range(4):
                for jq in range(2):
                    for u in range(2):
                        x0 = base + (jq*2+u)*8 + pr; x1 = x0 + 4
                        for hf in range(2):
                            k(f"v_perm_b32 v{STG + (pr&1)*8 + jq*4 + u*2 + hf}, v{x1}, v{x0}, s{sSELHI if hf else sSELLO}")
                if (pr, i) in WO_A:
                    for jj in range(8): k(f"v_accvgpr_write_b32 a{wo_areg(pr,i)+jj}, v{STG + (pr&1)*8 + jj}")
                else:
                    for jq in range(2): k(f"ds_write_b128 v{aW}, {v(STG + (pr&1)*8 + jq*4, 4)} offset:{wo_lds(pr,i) + jq*1024}")
                    k("s_waitcnt lgkmcnt(0)")
        return (32, issue, proc)
    def g_wv(lam, jq):
        def issue(base):
            k(f"s_xor_b32 s32, s{sT0}, {hex(lam << 19)}")
            for j4 in range(4):
                for p in range(2):
                    k(f"s_add_u32 s33, s32, {rowoff(jq*4+j4, p) * 8192}")
                    k(f"buffer_load_dword v{base + j4*2 + p}, v{oWV}, s[{S_C}:{S_C+3}], s33 offen {nt}")
        def proc(base):
            for j4 in range(4):
                for T in range(2):
                    k(f"v_perm_b32 v{wv_reg(lam,T)+jq*4+j4}, v{base + j4*2 + 1}, v{base + j4*2}, s{sSELHI if T else sSELLO}")
        return (8, issue, proc)
    qkg = [g_qk(l, q) for l in range(8) for q in range(2)]
    wvg = [g_wv(l, q) for l in range(8) for q in range(2)]
    wog = [g_wo(i) for i in range(4)]
    groups = []
    for i in range(16):
        groups.append(qkg[i]); groups.append(wvg[i])
        if i % 4 == 1: groups.append(wog[i // 4])
    RB, RE, MAXG = 4, 92, 7
    inflight = []
    head = RB; gi = 0; arrived = False
    def fits(n):
        nonlocal head
        h = head if head + n <= RE else RB
        for (b, m, *_r) in inflight:
            if h < b + m and b < h + n: return None
        return h
    while gi < len(groups) or inflight:
        if gi < len(groups) and len(inflight) < MAXG and fits(groups[gi][0]) is not None and not (gi == 5 and not arrived):
            n, issue, proc = groups[gi]; b = fits(n)
            issue(b); inflight.append((b, n, k.vm_tag(), proc, not arrived)); head = b + n; gi += 1
            continue
        if not arrived:
            k.wait_vm(fill_tag); arrive(k, 100); arrived = True
            continue
        b, n, tag, proc, pre = inflight.pop(0)
        cnt = k.vm_seq - tag - (1 if pre else 0)
        k(f"s_waitcnt vmcnt({max(cnt,0)})")
        proc(b)
    if opt.get("diag"):
        import gen; gen.wg_stamp(k, 1, 4)
    wait_arrivals(k, 100, opt.get("chain_wait_mask", 0x07), sFAST, fail)
    k(f"buffer_load_ushort v{100}, v{oM0}, s[{S_B}:{S_B+3}], 0 offen offset:8")
    k(f"buffer_load_ushort v{101}, v{oM0}, s[{S_B}:{S_B+3}], 0 offen")
    k(f"s_lshl_b32 s32, s{sJ}, 8")
    k(f"s_lshl_b32 s33, s{sW}, 6")
    k("s_add_u32 s32, s32, s33")
    k(f"s_add_u32 s{sPUB}, s32, {hex(MEMB)}")
    k("s_waitcnt vmcnt(0)")
    k(f"v_lshl_or_b32 v100, v101, 16, v100")
    k(f"v_min_u32 v100, -2, v100")
    k(f"s_mov_b64 exec, s[{sMASK}:{sMASK+1}]")
    k(f"buffer_store_dword v100, v{gPUB}, s[{S_WS}:{S_WS+3}], s{sPUB} offen sc1")
    k("s_mov_b64 exec, -1")
    k(f"s_add_u32 s{sPUB}, s{sPUB}, 8192")
    k(f"s_mov_b32 s{sS}, 0")
    k(f"s_mov_b32 s{sTAG}, 0")
    k(f"s_mov_b32 s{sSPIN}, {SPIN_LIMIT}")
    k(f"s_mov_b32 s{sMEM}, {hex(MEMB - L_MEM)}")
    for i in range(2): k(f"s_mov_b32 s{sPST+i}, {hex(PART + i*8192)}")
    k(f"s_lshl_b32 s32, s{sJ}, 19")
    k(f"s_add_u32 s{sKo}, s32, {hex(KX - L_MEM)}")
    k(f"s_add_u32 s{sVo}, s32, {hex(VX - L_MEM)}")
    k(f"s_add_u32 s32, s32, {hex(KMVM)}")
    k(f"s_lshl_b32 s33, s{sW}, 10")
    k(f"s_add_u32 s32, s32, s33")
    k(f"s_sub_u32 s{sQKo}, s32, {hex(L_KX)}")
    k(f"s_add_u32 s{sVMo}, s{sQKo}, 4096")
    k(f"s_lshl_b32 s{sM0}, s{sW}, 11")
    k(f"s_add_u32 s{sM0}, s{sM0}, {hex(L_KX)}")
    k(f"s_mov_b32 s{sNEED}, 1")
    kv_poll(k, fail)
    ws = f"s[{S_WS}:{S_WS+3}]"
    k(f"s_mov_b32 m0, s{sM0}")
    k(f"buffer_load_dwordx4 {v(VXC,4)}, v{aMEM0}, {ws}, s{sVo} offen sc1")
    k(f"buffer_load_dwordx4 {v(VXC+4,4)}, v{aMEM0}, {ws}, s{sVo} offen offset:1024 sc1")
    k(f"buffer_load_dwordx4 v{aMEM0}, {ws}, s{sKo} offen sc1 lds")
    k(f"buffer_load_dwordx4 v{aMEM0}, {ws}, s{sKo} offen offset:1024 sc1 lds")
    k(f"s_add_u32 s{sKo}, s{sKo}, 8192")
    k(f"s_add_u32 s{sVo}, s{sVo}, 8192")
    k(f"s_xor_b32 s{sM0}, s{sM0}, 0x2000")
    for i in range(16): k(f"v_mov_b32 v{Y+i}, 0")
    for i in range(8): k(f"v_mov_b32 v{VA+i}, 0")
    for p in range(1, 4): k(f"v_xor_b32 v{SS+p}, {p<<11}, v{aMEM0}")
    k(f"v_mov_b32 v{SS+8}, 0")
    k(f"v_xor_b32 v{SS+9}, 16, v{aQXw}")
    for T in range(4):
        for hh in range(2):
            k(f"ds_read_b128 {v(ZN + T*8 + hh*4, 4)}, v{aW} offset:{qk_lds(2,T) + hh*1024}")
    for _ in range(opt.get("pdepth", 1)):
        k(f"buffer_load_dwordx4 {v(X,4)}, v{aMEM0}, {ws}, s{sMEM} offen sc1")
        k(f"buffer_load_dwordx4 {v(X+4,4)}, v{aMEM0}, {ws}, s{sMEM} offen offset:1024 sc1")
    k("s_waitcnt lgkmcnt(0)")
    if opt.get("diag"):
        k("s_mov_b32 s80, 0"); k("s_mov_b32 s82, 0")
        k("s_memtime s[84:85]")
        k("s_waitcnt lgkmcnt(0)")

def emit_loop(k, opt, fail, done, st):
    ws = f"s[{S_WS}:{S_WS+3}]"
    top = k.label("L_step"); retA = k.label("L_retA"); retB = k.label("L_retB"); okB = k.label("L_okB")
    kvs = k.label("L_kvs"); kvb = k.label("L_kvb")
    def qk(lam, T):
        B = a(qk_areg(lam, T), 8) if lam in RES_L else v(ZN + T*8, 8)
        k(f"{SM} {v(Y+4*T,4)}, {v(X+4*lam,4)}, {B}, v{vIDX}")
    def vp(lam, T):
        k(f"{SM} {v(VA+4*T,4)}, {v(X+4*lam,4)}, {v(wv_reg(lam,T),8)}, v{vIDX}")
    def rdw(dst, off): k(f"ds_read_b128 {v(dst,4)}, v{aW} offset:{off}")
    def pollA():
        k(f"buffer_load_dwordx4 {v(X,4)}, v{aMEM0}, {ws}, s{sMEM} offen sc1")
        k(f"buffer_load_dwordx4 {v(X+4,4)}, v{aMEM0}, {ws}, s{sMEM} offen offset:1024 sc1")
    def zero2(r): k(f"v_mov_b64 {v(r,2)}, 0")
    def add(d, x, y): k(f"v_add_f32 v{d}, v{x}, v{y}")
    def cvt(d, x, y): k(f"v_cvt_pk_bf16_f32 v{d}, v{x}, v{y}")
    PD = opt.get("pdepth", 1)
    def front(lastv, lab_top, lab_ret):
        k(f"s_branch {lab_top}")
        k(".p2align 6")
        k(f"{lab_ret}:")
        k("s_mov_b64 exec, vcc"); pollA(); k("s_mov_b64 exec, -1")
        if opt.get("cnt"): k("s_add_u32 s80, s80, 1")
        k(f"s_sub_u32 s{sSPIN}, s{sSPIN}, 1")
        k(f"s_cbranch_scc1 {fail}")
        k(f"{lab_top}:")
        if not opt.get("nowait"): k("s_waitcnt vmcnt(0)")
        k(f"v_max3_u32 v{SS}, v{X}, v{X+1}, v{X+2}")
        k(f"v_max3_u32 v{SS+10}, v{X+3}, v{X+4}, v{X+5}")
        k(f"v_max3_u32 v{SS}, v{SS}, v{X+6}, v{X+7}")
        k(f"v_max_u32 v{SS}, v{SS}, v{SS+10}")
        k(f"v_cmp_eq_u32 vcc, -1, v{SS}")
        if not opt.get("nocheck"): k(f"s_cbranch_vccnz {lab_ret}")
        k(f"ds_write_b128 v{aMEM0}, {v(X,4)}")
        k(f"ds_write_b128 v{aMEM0}, {v(X+4,4)} offset:1024")
        if not lastv: stamp(k, opt, 0)
        L = not lastv
        KV = L and not opt.get("nokv")
        qk(0, 0)
        if L: k(f"s_cmp_ge_u32 s{sS}, s{sKC}")
        qk(0, 1)
        if L:
            k(f"s_cbranch_scc1 {kvs}")
            k(f"{kvb}:")
        qk(0, 2)
        if KV: k(f"buffer_load_dwordx4 {v(VXN,4)}, v{aMEM0}, {ws}, s{sVo} offen sc1")
        qk(0, 3)
        k("s_waitcnt lgkmcnt(0)")
        k("s_barrier")
        if not lastv: stamp(k, opt, 1)
        tg = {}
        seq = [(1, 0), (1, 1), (1, 2), (1, 3)]
        for i, lam in enumerate(range(2, 8)):
            k(f"ds_read_b128 {v(X+4*lam,4)}, v{SS+(lam>>1)} offset:{(lam&1)*1024}")
            tg[lam] = k.ds_tag()
            if i < 4: qk(*seq[i])
        zr = [(T, hh) for T in range(4) for hh in range(2)]
        def zread(i): T, hh = zr[i]; rdw(ZN + T*8 + hh*4, qk_lds(6, T) + hh*1024)
        if L: k(f"s_mov_b32 m0, s{sM0}")
        k.wait_ds(tg[2])
        qk(2, 0)
        if KV: k(f"buffer_load_dwordx4 {v(VXN+4,4)}, v{aMEM0}, {ws}, s{sVo} offen offset:1024 sc1")
        tvx = k.vm_tag()
        qk(2, 1); zread(0)
        qk(2, 2)
        if KV: k(f"buffer_load_dwordx4 v{aMEM0}, {ws}, s{sKo} offen sc1 lds")
        qk(2, 3); k.wait_ds(tg[7])
        qk(3, 0)
        if KV: k(f"buffer_load_dwordx4 v{aMEM0}, {ws}, s{sKo} offen offset:1024 sc1 lds")
        qk(3, 1); zread(1); qk(3, 2); zread(2); qk(3, 3); zread(3)
        qk(4, 0); zread(4); qk(4, 1); zread(5); qk(4, 2); zread(6); qk(4, 3); zread(7); tz = k.ds_tag()
        qk(5, 0)
        if not opt.get("novpub"): k(f"buffer_store_dword v{SS+8}, off, {ws}, s{sFCH} sc1")
        qk(5, 1)
        if L and not opt.get("nopf"): k(f"s_add_u32 s{sT0}, s{sPUB}, 8192")
        qk(5, 2)
        if L and not opt.get("nopf"): k(f"buffer_load_dword v{vJNK}, v{gPUB}, {ws}, s{sT0} offen sc1")
        qk(5, 3)
        qk(7, 0); qk(7, 1); qk(7, 2); qk(7, 3)
        k.wait_ds(tz)
        qk(6, 0); k("s_nop 0")
        qk(6, 1); k("s_nop 0")
        qk(6, 2); k(f"ds_read_b128 {v(ZN,4)}, v{aKXL}" if L else "s_nop 0")
        qk(6, 3); k(f"ds_read_b128 {v(ZN+4,4)}, v{aKXL} offset:1024" if L else "s_nop 0")
        if L: stamp(k, opt, 9)
        vp(0, 0); add(Y, Y, Y+2)
        vp(0, 1); add(Y+1, Y+1, Y+3)
        add(Y+2, Y+4, Y+6); add(Y+3, Y+5, Y+7)
        add(Y+8, Y+8, Y+10); add(Y+9, Y+9, Y+11)
        cvt(Y+4, Y, Y+2); cvt(Y+6, Y+1, Y+3)
        add(Y+10, Y+12, Y+14); add(Y+11, Y+13, Y+15)
        cvt(Y+5, Y+8, Y+10)
        if L: k(f"ds_write_b64 v{aQXw}, {v(Y+4,2)}")
        cvt(Y+7, Y+9, Y+11)
        if L: k(f"ds_write_b64 v{SS+9}, {v(Y+6,2)}")
        vp(1, 0)
        if not opt.get("novpub"): k(f"buffer_store_dwordx4 {v(Y+4,4)}, v{aL}, {ws}, s{sQKo} offen sc1")
        vp(1, 1)
        return tvx
    tvx = front(False, top, retA)
    k(f"ds_read_b128 {v(ZN+8,4)}, v{aKXL} offset:2048")
    vp(2, 0); k(f"ds_read_b128 {v(ZN+12,4)}, v{aKXL} offset:3072")
    vp(2, 1)
    k("s_waitcnt lgkmcnt(2)")
    k("s_barrier")
    stamp(k, opt, 2)
    rest = [(l, T) for l in range(3, 8) for T in range(2)]
    for e in range(4):
        k(f"ds_read_b128 {v(Y+4*e,4)}, v{aQF1 if e&1 else aQF0} offset:{(e>>1)*1024}")
        vp(*rest[e])
    tqf = k.ds_tag()
    for e in range(4):
        k(f"ds_read_b128 {v(X+4*e,4)}, v{aKXL} offset:{4096 + e*1024}")
        vp(*rest[4+e])
    tkx1 = k.ds_tag()
    vp(*rest[8]); k.wait_ds(tqf); vp(*rest[9])
    S0, S1, SM_ = SS, SS+4, SS+8
    mx, t2, nm, l0, l1 = X+10, X+11, X+12, X+13, X+14
    nstamp(k, opt, "a")
    for e in range(4):
        k(f"{MF} {v(S0,4)}, {v(ZN+4*e,4)}, {v(Y+4*e,4)}, {'0' if e==0 else v(S0,4)}")
        k(f"ds_read_b128 {v(X+16+4*e,4)}, v{aQF1 if e&1 else aQF0} offset:{2048 + (e>>1)*1024}")
        if e == 3: tkf = k.ds_tag(); k.wait_ds(tkx1)
    ZS = {(2, 3): ZN+16, (0, 1): ZN+24, (2, 1): ZN, (2, 2): ZN+8, (0, 2): X, (0, 3): X+8, (1, 2): ZN, (1, 3): ZN+8}
    wq = [(ZS[f_] + 4*h_, wo_lds(*f_) + 1024*h_) for f_ in ((2, 3), (0, 1), (2, 1), (2, 2)) for h_ in range(2)]
    def wnext():
        if wq: rdw(*wq.pop(0))
    for e in range(4):
        k(f"{MF} {v(S1,4)}, {v(X+4*e,4)}, {v(Y+4*e,4)}, {'0' if e==0 else v(S1,4)}")
        add(VA+e, VA+(e&1)+4*(e>>1), VA+2+(e&1)+4*(e>>1))
        if e == 3: k.wait_ds(tkf)
        else: wnext()
    fill = [[f"v_cvt_pk_bf16_f32 v{VA+4}, v{VA}, v{VA+1}"],
            [f"v_cvt_pk_bf16_f32 v{VA+5}, v{VA+2}, v{VA+3}"],
            [f"v_max3_f32 v{mx}, v{S0}, v{S0+1}, v{S0+2}"],
            [f"v_max3_f32 v{t2}, v{S1+1}, v{S1+2}, v{S1+3}"]]
    for e in range(4):
        k(f"{MF} {v(SM_,4)}, {v(X+16+4*e,4)}, {v(Y+4*e,4)}, {'0' if e==0 else v(SM_,4)}")
        for f_ in fill[e]: k(f_)
        wnext()
    P, PM = X, X+4
    nstamp(k, opt, "b")
    k(f"v_max3_f32 v{mx}, v{mx}, v{S0+3}, v{S1}")
    cvt(VA+6, VA+2, VA+3); cvt(VA+7, VA, VA+1)
    k(f"v_max_f32 v{mx}, v{mx}, v{t2}")
    k(f"v_mov_b32 v{PM+1}, 0")
    wnext()
    if not opt.get("novpub"): k(f"buffer_store_dwordx4 {v(VA+4,4)}, v{aL}, {ws}, s{sVMo} offen sc1")
    else: k("s_nop 0")
    k(f"s_add_u32 s{sKo}, s{sKo}, 8192")
    k(f"v_max3_f32 v{t2}, v{mx}, v{SM_}, v{SM_+1}")
    k(f"v_max3_f32 v{mx}, v{mx}, v{SM_}, v{SM_+1}")
    zero2(Y); zero2(Y+2)
    k(f"v_permlane16_swap_b32 v{mx}, v{t2}")
    k(f"v_max_f32 v{nm}, v{mx}, v{t2}")
    k(f"v_max_f32 v{mx}, v{mx}, v{t2}")
    zero2(Y+4); zero2(Y+6)
    k(f"v_permlane32_swap_b32 v{mx}, v{nm}")
    k(f"v_max_f32 v{mx}, v{mx}, v{nm}")
    k(f"v_mul_f32 v{nm}, s{sC}, v{mx}")
    for i in range(5):
        r = SS + 2*i
        k(f"v_pk_fma_f32 {v(r,2)}, {v(r,2)}, s[{sC}:{sC+1}], {v(nm,2)} op_sel_hi:[1,1,0] neg_lo:[0,0,1] neg_hi:[0,0,1]")
    for i in range(10):
        k(f"v_exp_f32 v{SS+i}, v{SS+i}")
        if i in (3, 5, 7, 9): k(f"v_cvt_pk_bf16_f32 v{P+(i-3)//2}, v{SS+i-3}, v{SS+i-2}")
    O = X+16
    nstamp(k, opt, "c")
    k(f"v_pk_add_f32 {v(SS,2)}, {v(SS,2)}, {v(SS+2,2)}")
    k(f"v_cvt_pk_bf16_f32 v{PM}, v{SS+8}, v{SS+9}")
    k(f"{MF} {v(O,4)}, {v(VXC,4)}, {v(P,4)}, 0")
    add(SS+4, SS+4, SS+6); add(SS+5, SS+5, SS+7)
    k(f"{MF} {v(O+4,4)}, {v(VXC+4,4)}, {v(P,4)}, 0")
    add(SS, SS, SS+8); add(SS+1, SS+1, SS+9)
    k(f"v_mfma_f32_16x16x16_bf16 {v(O,4)}, {v(VA+4,2)}, {v(PM,2)}, {v(O,4)}")
    add(SS+4, SS+4, SS+5); add(SS, SS, SS+1)
    k(f"v_mfma_f32_16x16x16_bf16 {v(O+4,4)}, {v(VA+6,2)}, {v(PM,2)}, {v(O+4,4)}")
    add(l0, SS, SS+4); add(l1, SS, SS+4)
    k(f"s_add_u32 s{sS}, s{sS}, 1")
    zero2(Y+8)
    k(f"v_permlane16_swap_b32 v{l0}, v{l1}")
    add(t2, l0, l1); add(l1, l0, l1)
    zero2(Y+10); zero2(Y+12)
    k(f"v_permlane32_swap_b32 v{t2}, v{l1}")
    add(l0, t2, l1)
    k(f"v_rcp_f32 v{nm}, v{l0}")
    zero2(Y+14)
    for i in range(4):
        k(f"v_pk_mul_f32 {v(O+2*i,2)}, {v(O+2*i,2)}, {v(nm,2)} op_sel_hi:[1,0]")
    OP = X+24
    for r in range(4):
        k(f"v_cvt_pk_bf16_f32 v{OP+r}, v{O+r}, v{O+4+r}")
    nstamp(k, opt, "d")
    k(f"ds_write_b128 v{aOXw}, {v(OP,4)}")
    tw = k.ds_tag()
    OF = [OP, VXC, VXC+4, X+28]
    def op(pr, i):
        B = a(wo_areg(pr, i), 8) if (pr, i) in WO_A else v(ZS[(pr, i)], 8)
        k(f"{SM} {v(Y+4*pr,4)}, {v(OF[i],4)}, {B}, v{vIDX}")
    CH = {2: VA, 0: VA+2, 3: VA+4, 1: VA+6}
    def f(pr, hf): cvt(CH[pr] + hf, Y + 4*pr + 2*hf, Y + 4*pr + 2*hf + 1)
    def pst(sg): k(f"buffer_store_dwordx4 {v(VA+4*sg,4)}, v{gPART}, {ws}, s{sPST+sg} offen {st}")
    k(f"v_xor_b32 v{SS+1}, {1<<9}, v{aOXw}")
    op(2, 0); k(f"v_xor_b32 v{SS+2}, {2<<9}, v{aOXw}")
    op(0, 0); k(f"v_xor_b32 v{SS+3}, {3<<9}, v{aOXw}")
    op(3, 0); k(f"s_add_u32 s{sMEM}, s{sMEM}, 8192")
    op(1, 0); k(f"s_add_u32 s{sVMo}, s{sVMo}, {KMVM_BLK}")
    k.wait_ds(tw)
    k("s_barrier")
    stamp(k, opt, 3)
    to = {}
    for i in range(1, 4):
        k(f"ds_read_b128 {v(OF[i],4)}, v{SS+i}"); to[i] = k.ds_tag()
    for h_ in range(4): rdw(X + 4*h_, wo_lds(0, 2 + (h_ >> 1)) + (h_ & 1)*1024)
    tx = k.ds_tag()
    k(f"v_mov_b32 v{SS+8}, s{sS}")
    k(f"v_xor_b32 v{aKXL}, 0x2000, v{aKXL}")
    k(f"v_xor_b32 v{SS+9}, 16, v{aQXw}")
    k.wait_ds(to[1])
    nstamp(k, opt, "e")
    op(2, 1)
    op(0, 1); k.wait_ds(to[2])
    op(2, 2); rdw(ZN, wo_lds(1, 2)); k.wait_ds(tx)
    op(0, 2); rdw(ZN+4, wo_lds(1, 2) + 1024)
    op(2, 3); rdw(ZN+8, wo_lds(1, 3))
    op(0, 3); rdw(ZN+12, wo_lds(1, 3) + 1024); tj = k.ds_tag()
    op(3, 1); k(f"v_xor_b32 v{SS+1}, {1<<11}, v{aMEM0}")
    op(1, 1); k(f"v_xor_b32 v{SS+2}, {2<<11}, v{aMEM0}")
    op(3, 2); k.wait_ds(tj); f(2, 0); f(2, 1); f(0, 0); f(0, 1)
    k(f"v_bfi_b32 v{VA}, 1, s{sTAG}, v{VA}")
    op(1, 2); pst(0)
    op(3, 3); k(f"v_xor_b32 v{SS+3}, {3<<11}, v{aMEM0}")
    op(1, 3); nstamp(k, opt, "f")
    k(f"ds_read_b128 {v(SS+4,4)}, v{aL} offset:{L_SEL - L_KX}"); tsel = k.ds_tag()
    for hh in range(4): rdw(ZN + 16 + hh*4, qk_lds(2, 2 + (hh >> 1)) + (hh & 1)*1024)
    k(f"s_xor_b32 s{sM0}, s{sM0}, 0x2000")
    f(3, 0); f(3, 1)
    k(f"v_bfi_b32 v{VA+4}, 1, s{sTAG}, v{VA+4}")
    f(1, 0); f(1, 1)
    pst(1)
    stamp(k, opt, 4)
    R = X+16; D = X+8
    def pollB():
        for i in range(2):
            k(f"buffer_load_dwordx4 {v(R+4*i,4)}, v{aL}, {ws}, s{sPRD} offen offset:{i*1024} sc1")
    for T in range(2):
        for hh in range(2): rdw(ZN + T*8 + hh*4, qk_lds(2, T) + hh*1024)
    k(f"s_mov_b32 s{sSPIN}, {SPIN_LIMIT}")
    k(f"s_add_u32 s{sVo}, s{sVo}, 8192")
    k(f"s_add_u32 s{sQKo}, s{sQKo}, {KMVM_BLK}")
    k.nop(opt.get("delayB", 0))
    pollB()
    for i in range(4): zero2(VA+2*i)
    for i in range(8): zero2(Y+2*i)
    k.wait_vm(tvx)
    for i in range(4): k(f"v_mov_b64 {v(VXC+2*i,2)}, {v(VXN+2*i,2)}")
    k.wait_ds(tsel)
    k(f"s_branch {okB}")
    k(".p2align 6")
    k(f"{retB}:")
    k("s_mov_b64 exec, vcc"); pollB(); k("s_mov_b64 exec, -1")
    if opt.get("cnt"): k("s_add_u32 s82, s82, 1")
    k(f"s_sub_u32 s{sSPIN}, s{sSPIN}, 1")
    k(f"s_cbranch_scc1 {fail}")
    k(f"{okB}:")
    if not opt.get("nowait"): k("s_waitcnt vmcnt(0)")
    k(f"v_bitop3_b32 v{SS}, v{R}, v{R+4}, s{sTAG} bitop3:{hex(BITOP)}")
    k(f"{MF} {v(D,4)}, {v(SS+4,4)}, {v(R,4)}, 0")
    k(f"v_and_b32 v{SS}, 1, v{SS}")
    k(f"{MF} {v(D,4)}, {v(SS+4,4)}, {v(R+4,4)}, {v(D,4)}")
    k(f"v_cmp_ne_u32 vcc, 0, v{SS}")
    if not opt.get("nocheck"): k(f"s_cbranch_vccnz {retB}")
    stamp(k, opt, 5)
    k(f"s_mov_b32 s{sSPIN}, {SPIN_LIMIT}")
    k(f"s_xor_b32 s{sTAG}, s{sTAG}, 1")
    k.nop(4)
    k(f"v_add_f32_dpp v{D}, v{D}, v{D} row_ror:4 row_mask:0xf bank_mask:0xf")
    k(f"v_add_f32_dpp v{D+1}, v{D+1}, v{D+1} row_ror:4 row_mask:0xf bank_mask:0xf")
    k("s_nop 0")
    k(f"v_add_f32_dpp v{D}, v{D}, v{D} row_ror:8 row_mask:0xf bank_mask:0xf")
    k(f"v_add_f32_dpp v{D+1}, v{D+1}, v{D+1} row_ror:8 row_mask:0xf bank_mask:0xf")
    k(f"s_mov_b64 exec, s[{sMASK}:{sMASK+1}]")
    cvt(SS, D, D+1)
    k(f"v_min_u32 v{SS}, -2, v{SS}")
    k(f"buffer_store_dword v{SS}, v{gPUB}, {ws}, s{sPUB} offen {st}")
    k("s_mov_b64 exec, -1")
    stamp(k, opt, 6)
    k(f"s_add_u32 s{sPUB}, s{sPUB}, 8192")
    k.nop(opt.get("delayA", 0))
    pollA()
    k("s_waitcnt lgkmcnt(0)")
    k(f"s_cmp_lt_u32 s{sS}, 63")
    k(f"s_cbranch_scc1 {top}")
    top2 = k.label("L_fin"); retA2 = k.label("L_retA2")
    front(True, top2, retA2)
    for l in range(2, 8):
        for T in range(2): vp(l, T)
    k.nop(8)
    for e in range(4): add(VA+e, VA+(e&1)+4*(e>>1), VA+2+(e&1)+4*(e>>1))
    cvt(VA+4, VA, VA+1); cvt(VA+5, VA+2, VA+3); cvt(VA+6, VA+2, VA+3); cvt(VA+7, VA, VA+1)
    k(f"buffer_store_dwordx4 {v(VA+4,4)}, v{aL}, {ws}, s{sVMo} offen sc1")
    k(f"v_mov_b32 v{SS+8}, 64")
    k("s_waitcnt vmcnt(0)")
    k(f"buffer_store_dword v{SS+8}, off, {ws}, s{sFCH} sc1")
    k(f"s_branch {done}")
    k(f"{kvs}:")
    k(f"s_add_u32 s{sNEED}, s{sS}, 2")
    kv_poll(k, fail)
    k(f"s_branch {kvb}")

def emit_chain(k, opt, fail):
    emit_setup(k, opt, fail)
    slow = k.label("L_slow"); done = k.label("L_chdone")
    if opt.get("force_slow"): k(f"s_mov_b32 s{sFAST}, 0")
    k(f"s_cmp_eq_u32 s{sFAST}, 0")
    k(f"s_cbranch_scc1 {slow}")
    emit_loop(k, opt, fail, done, "")
    k(f"{slow}:")
    emit_loop(k, opt, fail, done, "sc1")
    k(f"{done}:")
    if opt.get("diag"):
        k("s_memtime s[86:87]")
        k("s_memrealtime s[88:89]")
        k("s_waitcnt lgkmcnt(0)")
        k(f"s_lshl_b32 s32, s{sJ}, 2")
        k(f"s_add_u32 s32, s32, s{sW}")
        k("s_lshl_b32 s32, s32, 7")
        k(f"s_add_u32 s32, s32, {hex(DIAG)}")
        k("v_mov_b32 v5, 0")
        k("s_mov_b64 exec, 1")
        for i in range(13):
            k(f"v_mov_b32 v4, s{64+2*i}")
            k(f"buffer_store_dword v4, v5, s[{S_WS}:{S_WS+3}], s32 offen offset:{4*i}")
        k(f"v_mov_b32 v4, s{sFAST}")
        k(f"buffer_store_dword v4, v5, s[{S_WS}:{S_WS+3}], s32 offen offset:52")
    k("s_endpgm")
```

```python
from asmlib import *
KNAME = "concat_heads__ssm_conv_s5__memory_aug_recurrent_mem_tr__prompt_kernel"
WS_BYTES = 0x10000000
F_KV   = 0x0000000
F_CH   = 0x0004000
F_W2   = 0x0006000
F_A    = 0x0007000
DIAG   = 0x0010000
MEMB   = 0x0100000
PART   = 0x0200000
KMVM   = 0x5000000
KMVM_BLK = 8192
KX     = 0x1000000
VX     = 0x2000000
W2P    = 0x3000000
HBUF   = 0x4000000
S_WS, S_A, S_B, S_DBG, S_C, S_D = 4, 8, 12, 16, 20, 24
sW, sJ, sG, sXCC = 28, 29, 30, 31
P_AX, P_LRE, P_LIM, P_BRE, P_BIM, P_CRE, P_CIM, P_LOGDT = 64, 66, 68, 70, 72, 74, 76, 78
P_DSKIP, P_BX, P_MEM0, P_WQ, P_WK, P_WV, P_WO, P_SEG = 80, 82, 84, 86, 88, 90, 92, 94
P_OUT, P_DBG, P_WS = 96, 98, 100
SPIN_LIMIT = 0x40000

def srd(k, dst, ptr, nbytes):
    k(f"s_mov_b32 s{dst}, s{ptr}")
    k(f"s_and_b32 s{dst+1}, s{ptr+1}, 0xffff")
    k(f"s_mov_b32 s{dst+2}, {hex(nbytes)}")
    k(f"s_mov_b32 s{dst+3}, 0x20000")

def arrive(k, vt, mode_label=None):
    k("s_barrier")
    skip = k.label("L_arr")
    k(f"s_cmp_lg_u32 s{sW}, 0")
    k(f"s_cbranch_scc1 {skip}")
    k(f"s_mul_i32 s32, s{sXCC}, 6")
    k("s_lshl_b64 s[34:35], 1, s32")
    k("s_or_b32 s35, s35, 0x01000000")
    k(f"s_lshl_b32 s32, s{sG}, 3")
    k(f"v_mov_b32 v{vt}, s34")
    k(f"v_mov_b32 v{vt+1}, s35")
    k(f"v_mov_b32 v{vt+2}, s32")
    k("s_mov_b64 s[36:37], exec")
    k("s_mov_b64 exec, 1")
    k(f"buffer_atomic_add_x2 v[{vt}:{vt+1}], v{vt+2}, s[{S_DBG}:{S_DBG+3}], 0 offen offset:128")
    k("s_mov_b64 exec, s[36:37]")
    k(f"{skip}:")

def wait_arrivals(k, vt, groups_mask, s_fast, fail):
    loop = k.label("L_wa")
    k(f"v_mbcnt_lo_u32_b32 v{vt+2}, -1, 0")
    k(f"v_mbcnt_hi_u32_b32 v{vt+2}, -1, v{vt+2}")
    k(f"v_and_b32 v{vt+2}, 7, v{vt+2}")
    k(f"v_lshlrev_b32 v{vt+2}, 3, v{vt+2}")
    k("s_mov_b32 s32, 0")
    k(f"{loop}:")
    k(f"buffer_load_dwordx2 v[{vt}:{vt+1}], v{vt+2}, s[{S_DBG}:{S_DBG+3}], 0 offen offset:128 sc1")
    k("s_add_u32 s32, s32, 1")
    k(f"s_cmp_gt_u32 s32, {SPIN_LIMIT}")
    k(f"s_cbranch_scc1 {fail}")
    k("s_waitcnt vmcnt(0)")
    k(f"v_lshrrev_b32 v{vt+3}, 24, v{vt+1}")
    k(f"v_cmp_ne_u32 vcc, 32, v{vt+3}")
    k(f"s_and_b32 s33, vcc_lo, {groups_mask}")
    k("s_cmp_lg_u32 s33, 0")
    k(f"s_cbranch_scc1 {loop}")
    k("s_nop 3")
    k(f"v_readlane_b32 s34, v{vt}, s{sG}")
    k(f"v_readlane_b32 s35, v{vt+1}, s{sG}")
    k(f"s_mul_i32 s32, s{sXCC}, 6")
    k("s_lshl_b64 s[36:37], 32, s32")
    k("s_or_b32 s37, s37, 0x20000000")
    k("s_cmp_eq_u64 s[34:35], s[36:37]")
    k(f"s_cselect_b32 s{s_fast}, 1, 0")

MF = "v_mfma_f32_16x16x32_bf16"
def lane_split(k, LN, C_, G_):
    k(f"v_and_b32 v{LN}, 63, v0")
    k(f"v_and_b32 v{C_}, 15, v{LN}")
    k(f"v_lshrrev_b32 v{G_}, 4, v{LN}")

def xdma_addr(k, dst, LN, t1, t2, rowbytes_log2=10):
    k(f"v_lshrrev_b32 v{t1}, 4, v{LN}")
    k(f"v_and_b32 v{t2}, 7, v{LN}")
    k(f"v_xor_b32 v{t1}, v{t1}, v{t2}")
    k(f"s_and_b32 s32, s{sW}, 1")
    k("s_lshl_b32 s32, s32, 2")
    k(f"v_xor_b32 v{t1}, s32, v{t1}")
    k(f"v_lshlrev_b32 v{t1}, 4, v{t1}")
    k(f"v_lshrrev_b32 v{t2}, 3, v{LN}")
    k(f"v_lshl_add_u32 v{t1}, v{t2}, {rowbytes_log2}, v{t1}")
    k(f"s_lshl_b32 s32, s{sW}, {3 + rowbytes_log2}")
    k(f"v_add_u32 v{dst}, s32, v{t1}")

def xfrag_addr(k, d0, d1, C_, G_, t1, t2):
    k(f"v_lshrrev_b32 v{t1}, 1, v{C_}")
    k(f"v_xor_b32 v{t1}, v{t1}, v{G_}")
    k(f"v_lshlrev_b32 v{t1}, 4, v{t1}")
    k(f"v_lshl_add_u32 v{d0}, v{C_}, 7, v{t1}")
    k(f"v_xor_b32 v{d1}, 64, v{d0}")

def w_loader(k, srd_, voff, dst_fmt, nt, land, tmp, sel_lo, sel_hi, first_hook=None):
    NG, D = 16, 6
    tags = {}
    for gi in range(NG + D - 1):
        if gi < NG:
            b = land + (gi % D) * 8
            for jd in range(4):
                for p in range(2):
                    k(f"s_mov_b32 s33, {(32*gi + 2*jd + p) * 8192}")
                    k(f"buffer_load_dword v{b + jd*2 + p}, v{voff}, s[{srd_}:{srd_+3}], s33 offen {nt}")
            tags[gi] = k.vm_tag()
        if gi == D - 2 and first_hook: first_hook()
        gp = gi - (D - 1)
        if gp >= 0:
            n = k.vm_seq - tags[gp] - (1 if (first_hook and gp <= D - 2) else 0)
            k(f"s_waitcnt vmcnt({max(n, 0)})")
            b = land + (gp % D) * 8
            for jd in range(4):
                for T in range(2):
                    kind, idx = dst_fmt(gp, T, jd)
                    d = idx if kind == 'v' else tmp + T
                    k(f"v_perm_b32 v{d}, v{b + jd*2 + 1}, v{b + jd*2}, s{sel_hi if T else sel_lo}")
                for T in range(2):
                    kind, idx = dst_fmt(gp, T, jd)
                    if kind == 'a': k(f"v_accvgpr_write_b32 a{idx}, v{tmp + T}")
```

```python
from common import *
WF = 128
aDMA, aX0, aX1, aL = 1, 2, 3, 4
XF, ACC, PK = 8, 40, 56
sS, sXo, sM0, sOUT, sFL, sSELLO, sSELHI, sT0, sRD = 38, 39, 40, 41, 42, 43, 44, 45, 46
def wf(kap, T): return WF + (kap*2 + T)*4

def emit(k, opt, fail):
    ws = f"s[{S_WS}:{S_WS+3}]"
    k.c("================= K/V projection role =================")
    k(f"s_cmp_eq_u32 s{sG}, 1")
    k(f"s_cselect_b32 s{S_A}, s{P_WK}, s{P_WV}")
    k(f"s_cselect_b32 s{S_A+1}, s{P_WK+1}, s{P_WV+1}")
    k(f"s_and_b32 s{S_A+1}, s{S_A+1}, 0xffff")
    k(f"s_mov_b32 s{S_A+2}, {hex(512*8192)}")
    k(f"s_mov_b32 s{S_A+3}, 0x20000")
    srd(k, S_B, P_BX, 2048*1024)
    k(f"s_mov_b32 s{sSELLO}, 0x05040100")
    k(f"s_mov_b32 s{sSELHI}, 0x07060302")
    LN, C_, G_, t1, t2, oW = 100, 101, 102, 103, 104, 105
    lane_split(k, LN, C_, G_)
    xdma_addr(k, aDMA, LN, t1, t2)
    xfrag_addr(k, aX0, aX1, C_, G_, t1, t2)
    k(f"v_lshlrev_b32 v{aL}, 4, v{LN}")
    k(f"v_lshlrev_b32 v{t1}, 16, v{G_}")
    k(f"v_lshl_add_u32 v{t1}, v{C_}, 2, v{t1}")
    k(f"s_lshl_b32 s32, s{sJ}, 8")
    k(f"s_lshl_b32 s33, s{sW}, 6")
    k("s_add_u32 s32, s32, s33")
    k(f"v_add_u32 v{oW}, s32, v{t1}")
    k(f"s_sub_u32 s32, s{sG}, 1")
    k("s_lshl_b32 s33, s32, 2")
    k(f"s_lshl_b32 s34, s{sJ}, 8")
    k("s_add_u32 s33, s33, s34")
    k(f"s_add_u32 s{sFL}, s33, {hex(F_KV)}")
    k(f"v_mov_b32 v106, 0")
    k(f"buffer_store_dword v106, off, {ws}, s{sFL} sc1")
    ft = k.vm_tag()
    k("s_lshl_b32 s32, s32, 24")
    k(f"s_lshl_b32 s33, s{sJ}, 19")
    k("s_add_u32 s32, s32, s33")
    k(f"s_add_u32 s{sOUT}, s32, {hex(KX)}")
    def dma(n=8):
        for kp in range(n):
            k(f"s_add_u32 m0, s{sM0}, {kp*4096}")
            k(f"s_add_u32 s{sT0}, s{sXo}, {kp*128}")
            k(f"buffer_load_dwordx4 v{aDMA}, s[{S_B}:{S_B+3}], s{sT0} offen lds")
    def dma_adv():
        k(f"s_add_u32 s{sXo}, s{sXo}, 32768")
        k(f"s_add_u32 s{sM0}, s{sM0}, 32768")
        k(f"s_and_b32 s{sM0}, s{sM0}, 0x1ffff")
    k(f"s_mov_b32 s{sXo}, 0")
    k(f"s_lshl_b32 s{sM0}, s{sW}, 10")
    for i in range(3):
        dma(); dma_adv()
    def hook():
        k.wait_vm(ft); arrive(k, 106)
    w_loader(k, S_A, oW, lambda kap, T, jd: ('v', wf(kap, T) + jd), opt.get("wflags", ""), 8, 106, sSELLO, sSELHI, hook)
    k(f"s_mov_b32 s{sS}, 0")
    isv = k.label("L_kv_v")
    k(f"s_cmp_eq_u32 s{sG}, 2")
    k(f"s_cbranch_scc1 {isv}")
    for V in (0, 1):
        if V: k(f"{isv}:")
        k(f"s_lshl_b32 s32, s{sW}, {11 if V else 10}")
        k(f"s_add_u32 s{sOUT}, s{sOUT}, s32")
        top = k.label("L_kvtop"); ent = k.label("L_kvent")
        k("s_waitcnt vmcnt(0)")
        k(f"s_branch {ent}")
        k(".p2align 6")
        k(f"{top}:")
        k("s_waitcnt vmcnt(11)")
        k(f"{ent}:")
        k("s_barrier")
        k(f"s_max_u32 s32, s{sS}, 1")
        k("s_sub_u32 s32, s32, 1")
        k(f"v_mov_b32 v106, s32")
        k(f"buffer_store_dword v106, off, {ws}, s{sFL} sc1")
        def rd(i):
            kap, rt = i >> 1, i & 1
            k(f"ds_read_b128 {v(XF + (i % 8)*4, 4)}, v{aX1 if kap & 1 else aX0} offset:{(kap >> 1)*4096 + rt*2048}")
            return k.ds_tag()
        tg = {}
        for i in range(6): tg[i] = rd(i)
        dq = list(range(8))
        for kap in range(16):
            k.wait_ds(tg[2*kap + 1])
            for rt in range(2):
                for T in range(2):
                    acc = v(ACC + (rt*2 + T)*4, 4); xf = v(XF + ((2*kap + rt) % 8)*4, 4); w_ = v(wf(kap, T), 4)
                    c_ = '0' if kap == 0 else acc
                    k(f"{MF} {acc}, {xf}, {w_}, {c_}" if V else f"{MF} {acc}, {w_}, {xf}, {c_}")
                    j = 2*kap + 6 + rt
                    if T == 0 and j < 32: tg[j] = rd(j)
            if kap % 2 == 1 and dq:
                kp = dq.pop(0)
                k(f"s_add_u32 m0, s{sM0}, {kp*4096}")
                k(f"s_add_u32 s{sT0}, s{sXo}, {kp*128}")
                k(f"buffer_load_dwordx4 v{aDMA}, s[{S_B}:{S_B+3}], s{sT0} offen lds")
        dma_adv()
        for a_ in (aX0, aX1):
            k(f"v_add_u32 v{a_}, 0x8000, v{a_}")
            k(f"v_and_b32 v{a_}, 0x1ffff, v{a_}")
        for u in range(2):
            for r in range(4):
                if V:
                    src = ACC + ((r >> 1)*2 + u)*4 + (r & 1)*2
                    k(f"v_cvt_pk_bf16_f32 v{PK + u*4 + r}, v{src}, v{src+1}")
                else:
                    k(f"v_cvt_pk_bf16_f32 v{PK + u*4 + r}, v{ACC + u*8 + r}, v{ACC + u*8 + 4 + r}")
        k(f"s_add_u32 s33, s{sOUT}, {1024 if V else 4096}")
        k(f"buffer_store_dwordx4 {v(PK,4)}, v{aL}, {ws}, s{sOUT} offen sc1")
        k(f"buffer_store_dwordx4 {v(PK+4,4)}, v{aL}, {ws}, s33 offen sc1")
        k(f"s_add_u32 s{sOUT}, s{sOUT}, 8192")
        k(f"s_add_u32 s{sS}, s{sS}, 1")
        k(f"s_cmp_lt_u32 s{sS}, 64")
        k(f"s_cbranch_scc1 {top}")
        k("s_waitcnt vmcnt(0)")
        k("s_barrier")
        k("v_mov_b32 v106, 64")
        k(f"buffer_store_dword v106, off, {ws}, s{sFL} sc1")
        if opt.get("diag"):
            import gen; gen.wg_stamp(k, 2, 108)
        k("s_endpgm")
```

```python
from common import *
import math, struct
def f2u(x): return hex(struct.unpack("<I", struct.pack("<f", x))[0])
aD0, aD1, aX0, aX1, aEW, aER, aHW, aHR, gH, vOWN = 1, 2, 3, 4, 5, 6, 7, 8, 9, 10
LR, LI, L8R, L8I, CR, CI, HR, HI = range(12, 20)
XF, ACC, EB, ZR, ZI, GR, GI, TT, PKD, DS4, XD = 20, 52, 68, 100, 101, 102, 103, 104, 108, 116, 120
gY, gXD, aD2 = 124, 125, 126
sB, sXo, sM0, sHo, sFA, sFAST, sSPIN, sT0, sSELLO, sSELHI, sAC, sQ, sYo, sXD, sWB = range(38, 53)
L_E, L_H = 0x20000, 0x21000

def emit(k, opt, fail):
    ws = f"s[{S_WS}:{S_WS+3}]"
    k.c("================= S5 role =================")
    srd(k, S_A, P_BRE, 512*1024)
    srd(k, S_B, P_BIM, 512*1024)
    srd(k, S_C, P_CRE, 512*1024)
    srd(k, S_D, P_CIM, 512*1024)
    k(f"s_mov_b32 s{sSELLO}, 0x05040100")
    k(f"s_mov_b32 s{sSELHI}, 0x07060302")
    LN, C_, G_, t1, t2, oB, oC = 240, 241, 242, 243, 244, 245, 246
    lane_split(k, LN, C_, G_)
    k(f"s_lshl_b32 s{sFA}, s{sJ}, 2")
    k(f"s_add_u32 s{sFA}, s{sFA}, {hex(F_A)}")
    k(f"v_mov_b32 v{TT}, 0")
    k(f"buffer_store_dword v{TT}, off, {ws}, s{sFA} sc1")
    k(f"v_lshlrev_b32 v{t1}, 10, v{C_}")
    k(f"v_lshl_add_u32 v{t1}, v{G_}, 4, v{t1}")
    k(f"s_lshl_b32 s32, s{sJ}, 14")
    k(f"v_add_u32 v{oB}, s32, v{t1}")
    for kap in range(16):
        for T in range(2):
            sr = S_B if T else S_A
            k(f"buffer_load_dwordx4 {a((kap*2+T)*4, 4)}, v{oB}, s[{sr}:{sr+3}], 0 offen offset:{kap*64}")
    k("s_waitcnt vmcnt(32)")
    arrive(k, TT)
    k(f"s_lshl_b32 s32, s{sJ}, 5")
    k(f"v_lshl_add_u32 v{t1}, v{C_}, 1, s32")
    for i, p in enumerate((P_LRE, P_LIM, P_LOGDT)):
        k(f"global_load_ushort v{TT+i}, v{t1}, s[{p}:{p+1}]")
    k(f"s_lshr_b32 s32, s{sJ}, 2")
    k("s_lshl_b32 s32, s32, 7")
    k(f"s_lshl_b32 s33, s{sW}, 5")
    k(f"s_add_u32 s{sWB}, s32, s33")
    k(f"v_lshl_add_u32 v{t2}, v{G_}, 3, s{sWB}")
    k(f"global_load_dwordx2 {v(XD,2)}, v{t2}, s[{P_DSKIP}:{P_DSKIP+1}]")
    k(f"v_lshlrev_b32 v{t1}, 10, v{C_}")
    k(f"v_lshl_add_u32 v{t1}, v{G_}, 3, v{t1}")
    k(f"s_lshl_b32 s32, s{sWB}, 9")
    k(f"v_add_u32 v{oC}, s32, v{t1}")
    tags = {}
    D = 6
    for gi in range(8 + D - 1):
        if gi < 8:
            b = 128 + (gi % D)*16
            for q in range(4):
                k(f"buffer_load_dwordx2 {v(b + q*4, 2)}, v{oC}, s[{S_C}:{S_C+3}], 0 offen offset:{(gi*4+q)*32}")
                k(f"buffer_load_dwordx2 {v(b + q*4 + 2, 2)}, v{oC}, s[{S_D}:{S_D+3}], 0 offen offset:{(gi*4+q)*32}")
            tags[gi] = k.vm_tag()
        gp = gi - (D - 1)
        if gp >= 0:
            k.wait_vm(tags[gp]); b = 128 + (gp % D)*16
            for q in range(4):
                for jd in range(4):
                    k(f"v_perm_b32 v{PKD+jd}, v{b + q*4 + 2 + (jd>>1)}, v{b + q*4 + (jd>>1)}, s{sSELHI if jd & 1 else sSELLO}")
                for jd in range(4):
                    k(f"v_accvgpr_write_b32 a{128 + (gp*4+q)*4 + jd}, v{PKD+jd}")
    lre, lim, ldt, x0, x1, x2, x3 = TT, TT+1, TT+2, PKD, PKD+1, PKD+2, PKD+3
    for r_ in (lre, lim, ldt): k(f"v_lshlrev_b32 v{r_}, 16, v{r_}")
    k(f"v_mul_f32 v{ldt}, {f2u(math.log2(math.e))}, v{ldt}")
    k(f"v_exp_f32 v{ldt}, v{ldt}")
    k("s_nop 0")
    k(f"v_cvt_pk_bf16_f32 v{ldt}, v{ldt}, v{ldt}")
    k(f"v_lshlrev_b32 v{ldt}, 16, v{ldt}")
    k(f"v_mul_f32 v{x0}, v{ldt}, v{lre}")
    k(f"v_mul_f32 v{x1}, v{ldt}, v{lim}")
    k(f"v_mul_f32 v{x0}, {f2u(math.log2(math.e))}, v{x0}")
    k(f"v_exp_f32 v{x0}, v{x0}")
    k(f"v_mul_f32 v{x1}, {f2u(1/(2*math.pi))}, v{x1}")
    k(f"v_rndne_f32 v{x2}, v{x1}")
    k(f"v_sub_f32 v{x1}, v{x1}, v{x2}")
    k(f"v_cos_f32 v{x2}, v{x1}")
    k(f"v_sin_f32 v{x3}, v{x1}")
    k("s_nop 0")
    k(f"v_mul_f32 v{LR}, v{x0}, v{x2}")
    k(f"v_mul_f32 v{LI}, v{x0}, v{x3}")
    k(f"v_mul_f32 v{x0}, v{lre}, v{lre}")
    k(f"v_fma_f32 v{x0}, v{lim}, v{lim}, v{x0}")
    k(f"v_rcp_f32 v{x0}, v{x0}")
    k(f"v_add_f32 v{x1}, -1.0, v{LR}")
    k(f"v_mul_f32 v{x2}, v{x1}, v{lre}")
    k(f"v_fma_f32 v{x2}, v{LI}, v{lim}, v{x2}")
    k(f"v_mul_f32 v{x3}, v{LI}, v{lre}")
    k(f"v_fma_f32 v{x3}, -v{x1}, v{lim}, v{x3}")
    k(f"v_mul_f32 v{CR}, v{x2}, v{x0}")
    k(f"v_mul_f32 v{CI}, v{x3}, v{x0}")
    k(f"v_mov_b32 v{L8R}, v{LR}")
    k(f"v_mov_b32 v{L8I}, v{LI}")
    for _ in range(3):
        k(f"v_mul_f32 v{x0}, v{L8I}, v{L8I}")
        k(f"v_mul_f32 v{x1}, v{L8R}, v{L8I}")
        k(f"v_fma_f32 v{L8R}, v{L8R}, v{L8R}, -v{x0}")
        k(f"v_add_f32 v{L8I}, v{x1}, v{x1}")
    k(f"v_mov_b32 v{HR}, 0")
    k(f"v_mov_b32 v{HI}, 0")
    k(f"v_lshlrev_b32 v{DS4}, 16, v{XD}")
    k(f"v_and_b32 v{DS4+1}, 0xffff0000, v{XD}")
    k(f"v_lshlrev_b32 v{DS4+2}, 16, v{XD+1}")
    k(f"v_and_b32 v{DS4+3}, 0xffff0000, v{XD+1}")
    srd(k, S_A, P_AX, 2048*1024)
    srd(k, S_C, P_OUT, 2048*4096)
    k(f"v_lshrrev_b32 v{t1}, 4, v{LN}")
    k(f"v_and_b32 v{t2}, 7, v{LN}")
    k(f"v_xor_b32 v{t1}, v{t1}, v{t2}")
    k(f"v_lshlrev_b32 v{t1}, 4, v{t1}")
    k(f"v_lshrrev_b32 v{t2}, 3, v{LN}")
    k(f"v_lshl_add_u32 v{aD2}, v{t2}, 11, v{t1}")
    k(f"v_and_b32 v{t2}, 3, v{t2}")
    k(f"v_lshl_add_u32 v{t1}, v{t2}, 10, v{t1}")
    k(f"v_lshrrev_b32 v{t2}, 5, v{LN}")
    k(f"v_lshl_add_u32 v{t1}, v{t2}, 13, v{t1}")
    k(f"s_lshl_b32 s32, s{sW}, 15")
    k(f"v_add_u32 v{aD0}, s32, v{t1}")
    k(f"v_xor_b32 v{aD1}, 64, v{aD0}")
    xfrag_addr(k, aX0, aX1, C_, G_, t1, t2)
    k(f"v_add_u32 v{aX0}, s32, v{aX0}")
    k(f"v_add_u32 v{aX1}, s32, v{aX1}")
    k(f"s_lshl_b32 s33, s{sW}, 2")
    k(f"v_add_u32 v{vOWN}, s33, v{G_}")
    k(f"v_mul_u32_u24 v{t1}, 144, v{C_}")
    k(f"v_add_u32 v{aER}, {hex(L_E)}, v{t1}")
    k(f"v_lshl_add_u32 v{aEW}, v{vOWN}, 3, v{aER}")
    k(f"s_lshl_b32 s33, s{sW}, 11")
    k(f"s_add_u32 s33, s33, {hex(L_H)}")
    k(f"v_lshlrev_b32 v{t1}, 9, v{G_}")
    k(f"v_lshl_add_u32 v{t1}, v{C_}, 2, v{t1}")
    k(f"v_add_u32 v{aHW}, s33, v{t1}")
    k(f"v_lshl_add_u32 v{aHR}, v{LN}, 4, s33")
    k(f"v_lshrrev_b32 v{t1}, 2, v{LN}")
    k(f"v_lshlrev_b32 v{t1}, 11, v{t1}")
    k(f"v_and_b32 v{t2}, 3, v{LN}")
    k(f"v_lshl_add_u32 v{gH}, v{t2}, 4, v{t1}")
    k(f"s_lshl_b32 s32, s{sW}, 16")
    k(f"s_lshl_b32 s33, s{sJ}, 6")
    k("s_add_u32 s32, s32, s33")
    k(f"s_add_u32 s{sHo}, s32, {hex(HBUF)}")
    k(f"v_lshlrev_b32 v{t1}, 12, v{C_}")
    k(f"v_lshl_add_u32 v{gY}, v{G_}, 4, v{t1}")
    k(f"v_lshlrev_b32 v{t1}, 10, v{C_}")
    k(f"v_lshl_add_u32 v{gXD}, v{G_}, 3, v{t1}")
    wait_arrivals(k, TT, 0x80, sFAST, fail)
    if opt.get("force_slow"): k(f"s_mov_b32 s{sFAST}, 0")
    k(f"s_lshl_b32 s{sM0}, s{sW}, 15")
    k(f"s_mov_b32 s{sXo}, 0")
    def dpiece(q_, i, nxt):
        kp, o = i >> 2, i & 3
        k(f"s_add_u32 m0, s{sM0}, {q_*8192 + kp*4096 + o*1024}")
        k(f"s_add_u32 s{sT0}, s{sXo}, {nxt*131072 + (16*(o & 1) + 4*(o >> 1))*1024 + q_*256 + kp*128}")
        k(f"buffer_load_dwordx4 v{aD1 if o & 1 else aD0}, s[{S_A}:{S_A+3}], s{sT0} offen lds")
    for q_ in range(3):
        for i in range(8): dpiece(q_, i, 0)
    k(f"v_mov_b32 v{PKD}, 0")
    for _ in range(3): k(f"buffer_store_dword v{PKD}, off, {ws}, s{sFA} sc1")
    k(f"s_mov_b32 s{sB}, 0")
    top = k.label("L_a1")
    k(".p2align 6")
    k(f"{top}:")
    def rd(i):
        kap, rt = i >> 1, i & 1
        k(f"ds_read_b128 {v(XF + (i % 8)*4, 4)}, v{aX1 if kap & 1 else aX0} offset:{(kap >> 1)*4096 + rt*2048}")
        return k.ds_tag()
    for q_ in range(4):
        k(f"s_waitcnt vmcnt({[19, 19, 19, 16][q_]})" )
        tg = {}
        for i in range(8): tg[i] = rd(q_*8 + i)
        for kk in range(4):
            kap = q_*4 + kk
            k.wait_ds(tg[2*kk + 1])
            for rt in range(2):
                for T in range(2):
                    acc = v(ACC + (rt*2 + T)*4, 4)
                    k(f"{MF} {acc}, {v(XF + ((2*kap + rt) % 8)*4, 4)}, {a((kap*2+T)*4, 4)}, {'0' if kap == 0 else acc}")
            for i in (2*kk, 2*kk + 1): dpiece((q_ + 3) % 4, i, 0 if q_ == 0 else 1)
    k(f"s_add_u32 s{sXo}, s{sXo}, 131072")
    k.nop(2)
    U = lambda tau, T: ACC + ((tau >> 2)*2 + T)*4 + (tau & 3)
    def step(zr_in, zi_in, ur, ui, zr_out, zi_out, lr, li):
        k(f"v_fma_f32 v{TT}, v{lr}, v{zr_in}, v{ur}")
        k(f"v_fma_f32 v{TT+1}, v{lr}, v{zi_in}, v{ui}")
        k(f"v_fma_f32 v{TT+2}, -v{li}, v{zi_in}, v{TT}") if zr_out == zr_in else k(f"v_fma_f32 v{zr_out}, -v{li}, v{zi_in}, v{TT}")
        k(f"v_fma_f32 v{zi_out}, v{li}, v{zr_in}, v{TT+1}")
        if zr_out == zr_in: k(f"v_mov_b32 v{zr_out}, v{TT+2}")
    cur = (U(0, 0), U(0, 1))
    for tau in range(1, 8):
        nxt = (ZR, ZI) if tau & 1 else (GR, GI)
        step(cur[0], cur[1], U(tau, 0), U(tau, 1), nxt[0], nxt[1], LR, LI); cur = nxt
    k(f"ds_write_b64 v{aEW}, {v(ZR,2)}")
    k("s_waitcnt lgkmcnt(0) vmcnt(24)")
    k("s_barrier")
    for i in range(8): k(f"ds_read_b128 {v(EB + 4*i, 4)}, v{aER} offset:{i*16}")
    k(f"v_mov_b32 v{PKD}, s{sB}")
    k(f"v_mov_b32 v{ZR}, v{HR}")
    k(f"v_mov_b32 v{ZI}, v{HI}")
    k("s_waitcnt lgkmcnt(0)")
    k("s_barrier")
    cur = (HR, HI)
    for n in range(16):
        if n:
            k(f"v_cmp_eq_u32 vcc, {n}, v{vOWN}")
        nxt = (GR, GI) if cur == (HR, HI) else (HR, HI)
        if n:
            k(f"v_fma_f32 v{TT}, v{L8R}, v{cur[0]}, v{EB+2*n}")
            k(f"v_fma_f32 v{TT+1}, v{L8R}, v{cur[1]}, v{EB+2*n+1}")
            k(f"v_cndmask_b32 v{ZR}, v{ZR}, v{cur[0]}, vcc")
            k(f"v_cndmask_b32 v{ZI}, v{ZI}, v{cur[1]}, vcc")
            k(f"v_fma_f32 v{nxt[0]}, -v{L8I}, v{cur[1]}, v{TT}")
            k(f"v_fma_f32 v{nxt[1]}, v{L8I}, v{cur[0]}, v{TT+1}")
        else:
            step(cur[0], cur[1], EB, EB+1, nxt[0], nxt[1], L8R, L8I)
        cur = nxt
    assert cur == (HR, HI)
    cur = (ZR, ZI)
    for tau in range(8):
        step(cur[0], cur[1], U(tau, 0), U(tau, 1), U(tau, 0), U(tau, 1), LR, LI); cur = (U(tau, 0), U(tau, 1))
    for tau in range(8):
        zr, zi = U(tau, 0), U(tau, 1)
        k(f"v_mul_f32 v{TT}, v{CR}, v{zr}")
        k(f"v_mul_f32 v{TT+1}, v{CR}, v{zi}")
        k(f"v_fma_f32 v{TT}, -v{CI}, v{zi}, v{TT}")
        k(f"v_fma_f32 v{TT+1}, v{CI}, v{zr}, v{TT+1}")
        k(f"v_cvt_pk_bf16_f32 v{EB+tau}, v{TT}, -v{TT+1}")
        k(f"ds_write_b32 v{aHW}, v{EB+tau} offset:{tau*64}")
    k("s_waitcnt lgkmcnt(0)")
    k(f"ds_read_b128 {v(EB+8,4)}, v{aHR}")
    k(f"ds_read_b128 {v(EB+12,4)}, v{aHR} offset:1024")
    k(f"buffer_store_dword v{PKD}, off, {ws}, s{sFA} sc1")
    k(f"s_add_u32 s32, s{sHo}, 32768")
    sl = k.label("L_hs"); jn = k.label("L_hj")
    k("s_waitcnt lgkmcnt(0)")
    k(f"s_cmp_eq_u32 s{sFAST}, 0")
    k(f"s_cbranch_scc1 {sl}")
    k(f"buffer_store_dwordx4 {v(EB+8,4)}, v{gH}, {ws}, s{sHo} offen")
    k(f"buffer_store_dwordx4 {v(EB+12,4)}, v{gH}, {ws}, s32 offen")
    k(f"s_branch {jn}")
    k(f"{sl}:")
    k(f"buffer_store_dwordx4 {v(EB+8,4)}, v{gH}, {ws}, s{sHo} offen sc1")
    k(f"buffer_store_dwordx4 {v(EB+12,4)}, v{gH}, {ws}, s32 offen sc1")
    k(f"{jn}:")
    k(f"s_add_u32 s{sHo}, s{sHo}, {128*2048}")
    k(f"s_add_u32 s{sB}, s{sB}, 1")
    k(f"s_cmp_lt_u32 s{sB}, 16")
    k(f"s_cbranch_scc1 {top}")
    k("s_waitcnt vmcnt(0)")
    k("s_barrier")
    k(f"v_mov_b32 v{PKD}, 16")
    k(f"buffer_store_dword v{PKD}, off, {ws}, s{sFA} sc1")
    if opt.get("diag"):
        import gen; gen.wg_stamp(k, 1, TT)
    k(f"s_lshl_b32 s32, s{sW}, 15")
    k(f"v_subrev_u32 v{aX0}, s32, v{aX0}")
    k(f"v_subrev_u32 v{aX1}, s32, v{aX1}")
    k(f"s_and_b32 s32, s{sW}, 1")
    k("s_lshl_b32 s33, s32, 6")
    k(f"v_xor_b32 v{aD2}, s33, v{aD2}")
    k("s_lshl_b32 s33, s32, 14")
    k(f"s_lshr_b32 s34, s{sW}, 1")
    k("s_lshl_b32 s35, s34, 10")
    k("s_add_u32 s33, s33, s35")
    k(f"s_and_b32 s35, s{sJ}, 3")
    k("s_lshl_b32 s36, s35, 20")
    k("s_add_u32 s33, s33, s36")
    k(f"s_add_u32 s{sXo}, s33, {hex(HBUF)}")
    k("s_lshl_b32 s33, s34, 14")
    k("s_lshl_b32 s32, s32, 10")
    k(f"s_add_u32 s{sM0}, s33, s32")
    k(f"s_lshl_b32 s{sYo}, s35, 21")
    k(f"s_lshl_b32 s32, s{sWB}, 1")
    k(f"s_add_u32 s{sYo}, s{sYo}, s32")
    k(f"s_lshl_b32 s{sXD}, s35, 19")
    k(f"s_add_u32 s{sXD}, s{sXD}, s{sWB}")
    k(f"s_lshl_b32 s{sQ}, s35, 5")
    k(f"s_mov_b32 s{sAC}, 0")
    k(f"v_mbcnt_lo_u32_b32 v{aD0}, -1, 0")
    k(f"v_mbcnt_hi_u32_b32 v{aD0}, -1, v{aD0}")
    k(f"v_and_b32 v{aD0}, 31, v{aD0}")
    k(f"v_lshlrev_b32 v{aD0}, 2, v{aD0}")
    k(f"v_add_u32 v{aD0}, {hex(F_A)}, v{aD0}")
    def need_wait():
        ok = k.label("L_aok"); loop = k.label("L_ap")
        k(f"s_lshr_b32 s32, s{sQ}, 3")
        k("s_min_u32 s32, s32, 15")
        k(f"s_cmp_gt_u32 s{sAC}, s32")
        k(f"s_cbranch_scc1 {ok}")
        k(f"s_mov_b32 s{sSPIN}, {SPIN_LIMIT}")
        k(f"{loop}:")
        k(f"buffer_load_dword v{TT}, v{aD0}, {ws}, 0 offen sc1")
        k(f"s_sub_u32 s{sSPIN}, s{sSPIN}, 1")
        k(f"s_cbranch_scc1 {fail}")
        k("s_waitcnt vmcnt(0)")
        k(f"v_cmp_ge_u32 vcc, s32, v{TT}")
        k(f"s_cbranch_vccz L_got{ok}")
        k("s_sleep 2")
        k(f"s_branch {loop}")
        k(f"L_got{ok}:")
        k(f"s_add_u32 s{sAC}, s32, 1")
        k(f"{ok}:")
    def dma2():
        need_wait()
        for i in range(8):
            k(f"s_add_u32 m0, s{sM0}, {i*2048}")
            k(f"s_add_u32 s{sT0}, s{sXo}, {i*128}")
            k(f"buffer_load_dwordx4 v{aD2}, {ws}, s{sT0} offen sc1 lds")
        k(f"s_add_u32 s{sXo}, s{sXo}, 32768")
        k(f"s_add_u32 s{sM0}, s{sM0}, 32768")
        k(f"s_and_b32 s{sM0}, s{sM0}, 0x1ffff")
        k(f"s_add_u32 s{sQ}, s{sQ}, 1")
    for i in range(3): dma2()
    k(f"s_mov_b32 s{sB}, 0")
    top2 = k.label("L_a2"); ent = k.label("L_a2e")
    k("s_waitcnt vmcnt(16)")
    k(f"s_branch {ent}")
    k(".p2align 6")
    k(f"{top2}:")
    k("s_waitcnt vmcnt(18)")
    k(f"{ent}:")
    k("s_barrier")
    k(f"buffer_load_dwordx2 {v(XD,2)}, v{gXD}, s[{S_A}:{S_A+3}], s{sXD} offen")
    def rd2(i):
        k(f"ds_read_b128 {v(XF + (i % 8)*4, 4)}, v{aX1 if i & 1 else aX0} offset:{(i >> 1)*2048}")
        return k.ds_tag()
    tg = {}
    for i in range(7): tg[i] = rd2(i)
    dma2()
    for i in range(32):
        k.wait_ds(tg[i])
        acc = v(ACC + (i & 1)*4, 4)
        k(f"{MF} {acc}, {a(128 + i*4, 4)}, {v(XF + (i % 8)*4, 4)}, {'0' if i < 2 else acc}")
        if i + 7 < 32: tg[i+7] = rd2(i + 7)
    for a_ in (aX0, aX1):
        k(f"v_add_u32 v{a_}, 0x8000, v{a_}")
        k(f"v_and_b32 v{a_}, 0x1ffff, v{a_}")
    k("s_waitcnt vmcnt(8)")
    k(f"v_lshlrev_b32 v{TT}, 16, v{XD}")
    k(f"v_and_b32 v{TT+1}, 0xffff0000, v{XD}")
    k(f"v_lshlrev_b32 v{TT+2}, 16, v{XD+1}")
    k(f"v_and_b32 v{TT+3}, 0xffff0000, v{XD+1}")
    for r in range(4): k(f"v_mul_f32 v{TT+r}, v{TT+r}, v{DS4+r}")
    k(f"v_cvt_pk_bf16_f32 v{TT}, v{TT}, v{TT+1}")
    k(f"v_cvt_pk_bf16_f32 v{TT+2}, v{TT+2}, v{TT+3}")
    k(f"v_and_b32 v{TT+1}, 0xffff0000, v{TT}")
    k(f"v_lshlrev_b32 v{TT}, 16, v{TT}")
    k(f"v_and_b32 v{TT+3}, 0xffff0000, v{TT+2}")
    k(f"v_lshlrev_b32 v{TT+2}, 16, v{TT+2}")
    for r in range(4): k(f"v_add_f32 v{ACC+r}, v{ACC+r}, v{ACC+4+r}")
    for r in range(4): k(f"v_fma_f32 v{PKD+r}, 2.0, v{ACC+r}, v{TT+r}")
    k(f"buffer_store_dwordx4 {v(PKD,4)}, v{gY}, s[{S_C}:{S_C+3}], s{sYo} offen")
    k(f"s_add_u32 s{sYo}, s{sYo}, {16*4096}")
    k(f"s_add_u32 s{sXD}, s{sXD}, {16*1024}")
    k(f"s_add_u32 s{sB}, s{sB}, 1")
    k(f"s_cmp_lt_u32 s{sB}, 32")
    k(f"s_cbranch_scc1 {top2}")
    if opt.get("diag"):
        k("s_waitcnt vmcnt(0)")
        import gen; gen.wg_stamp(k, 2, TT)
    k("s_endpgm")
```

```python
from common import *
import math, struct
NG2 = 4
L_EX = 0x10000
L_QO, L_OO = 0, 0x2000
aDMA, aX0, aX1, aL, aKM, gPART, gOUT, vNEG = 1, 2, 3, 4, 5, 6, 7, 8
SEL, XF, QA, PK, QF, KXF, VXF, KMF, VMF = 12, 16, 48, 64, 72, 88, 120, 136, 152
SS, P, O, OF, ACC, R = 160, 172, 180, 196, 16, 88
T0 = 228
sS, sT, sXo, sM0, sKo, sKMo, sPST, sPRD, sOUT, sTAG, sKC, sCC, sFKV, sFCH, sFAST, sSPIN, sT0, sSELLO, sSELHI = range(38, 57)
sC = 58; sMK = 64
BITOP = 0x7e
def wq(kap, T): return (kap*2 + T)*4
def wo(T, e): return 128 + (T*4 + e)*4

def poll_flag(k, fail, loads, nreg, scache, sneed):
    ok = k.label("L_fok"); loop = k.label("L_fp")
    k(f"s_cmp_ge_u32 s{scache}, s{sneed}")
    k(f"s_cbranch_scc1 {ok}")
    k(f"s_mov_b32 s{sSPIN}, {SPIN_LIMIT}")
    k(f"{loop}:")
    for l in loads: k(l)
    k(f"s_sub_u32 s{sSPIN}, s{sSPIN}, 1")
    k(f"s_cbranch_scc1 {fail}")
    k("s_waitcnt vmcnt(0)")
    for i in range(1, nreg): k(f"v_min_u32 v{T0}, v{T0}, v{T0+i}")
    k("s_nop 0")
    k(f"v_readfirstlane_b32 s{scache}, v{T0}")
    k("s_nop 3")
    k(f"s_cmp_ge_u32 s{scache}, s{sneed}")
    k(f"s_cbranch_scc1 {ok}")
    k("s_sleep 2")
    k(f"s_branch {loop}")
    k(f"{ok}:")

def emit(k, opt, fail):
    ws = f"s[{S_WS}:{S_WS+3}]"
    k.c("================= attention / output projection role =================")
    srd(k, S_A, P_WQ, 512*8192)
    srd(k, S_B, P_BX, 2048*1024)
    srd(k, S_C, P_OUT, 2048*4096)
    srd(k, S_D, P_WO, 32*131072)
    k(f"s_mov_b32 s{sSELLO}, 0x05040100")
    k(f"s_mov_b32 s{sSELHI}, 0x07060302")
    cb = struct.unpack("<I", struct.pack("<f", 128 ** -0.5 * math.log2(math.e)))[0]
    k(f"s_mov_b32 s{sC}, {hex(cb)}")
    k(f"s_mov_b32 s{sC+1}, {hex(cb)}")
    LN, C_, G_, t1, t2, oW, oWO = 240, 241, 242, 243, 244, 245, 246
    lane_split(k, LN, C_, G_)
    xdma_addr(k, aDMA, LN, t1, t2)
    xfrag_addr(k, aX0, aX1, C_, G_, t1, t2)
    k(f"v_lshlrev_b32 v{aL}, 4, v{LN}")
    k(f"v_mov_b32 v{vNEG}, 0xff000000")
    k(f"v_lshlrev_b32 v{t1}, 16, v{G_}")
    k(f"v_lshl_add_u32 v{t1}, v{C_}, 2, v{t1}")
    k(f"s_lshl_b32 s32, s{sJ}, 8")
    k(f"s_lshl_b32 s33, s{sW}, 6")
    k("s_add_u32 s32, s32, s33")
    k(f"v_add_u32 v{oW}, s32, v{t1}")
    k(f"v_lshlrev_b32 v{t1}, 13, v{G_}")
    k(f"v_lshl_add_u32 v{t1}, v{C_}, 4, v{t1}")
    k(f"s_lshl_b32 s32, s{sJ}, 17")
    k(f"s_lshl_b32 s33, s{sW}, 8")
    k("s_add_u32 s32, s32, s33")
    k(f"v_add_u32 v{oWO}, s32, v{t1}")
    k(f"v_lshrrev_b32 v{t1}, 2, v{C_}")
    k(f"v_lshlrev_b32 v{t1}, 8, v{t1}")
    k(f"v_lshl_add_u32 v{t1}, v{G_}, 5, v{t1}")
    k(f"v_and_b32 v{t2}, 1, v{C_}")
    k(f"v_lshl_add_u32 v{t1}, v{t2}, 3, v{t1}")
    k(f"v_add_u32 v{aKM}, 2048, v{t1}")
    k(f"v_lshlrev_b32 v{t1}, 16, v{G_}")
    k(f"v_lshl_add_u32 v{t1}, v{C_}, 4, v{t1}")
    k(f"s_lshl_b32 s32, s{sW}, 18")
    k(f"s_lshl_b32 s33, s{sJ}, 8")
    k("s_add_u32 s32, s32, s33")
    k(f"v_add_u32 v{gPART}, s32, v{t1}")
    k(f"v_lshlrev_b32 v{t1}, 12, v{C_}")
    k(f"v_lshl_add_u32 v{gOUT}, v{G_}, 4, v{t1}")
    k(f"v_and_b32 v{t2}, 1, v{C_}")
    k(f"v_lshlrev_b32 v{t2}, 4, v{t2}")
    k(f"v_mov_b32 v{t1}, 0x3f80")
    k(f"v_lshlrev_b32 v{t2}, v{t2}, v{t1}")
    k(f"v_lshrrev_b32 v{t1}, 1, v{C_}")
    for i in range(4):
        k(f"v_cmp_eq_u32 vcc, {i}, v{t1}")
        k("s_nop 1")
        k(f"v_cndmask_b32 v{SEL+i}, 0, v{t2}, vcc")
    k(f"s_sub_u32 s{sS}, s{sG}, 3")
    k(f"s_lshl_b32 s32, s{sS}, 21")
    k(f"s_add_u32 s{sPST}, s32, {hex(W2P)}")
    k(f"s_lshl_b32 s32, s{sJ}, 15")
    k(f"s_lshl_b32 s33, s{sW}, 13")
    k("s_add_u32 s32, s32, s33")
    k(f"s_add_u32 s{sPRD}, s{sPST}, s32")
    k(f"s_lshl_b32 s32, s{sJ}, 19")
    k(f"s_lshl_b32 s33, s{sS}, 13")
    k("s_add_u32 s32, s32, s33")
    k(f"s_add_u32 s{sKo}, s32, {hex(KX)}")
    k(f"s_add_u32 s{sKMo}, s32, {hex(KMVM)}")
    k(f"s_lshl_b32 s32, s{sJ}, 8")
    k(f"s_add_u32 s{sFKV}, s32, {hex(F_KV)}")
    k(f"s_add_u32 s{sFCH}, s32, {hex(F_CH)}")
    k(f"s_lshl_b32 s32, s{sS}, 17")
    k(f"s_and_b32 s33, s{sJ}, 1")
    k("s_lshl_b32 s33, s33, 16")
    k("s_add_u32 s32, s32, s33")
    k(f"s_lshr_b32 s33, s{sJ}, 1")
    k("s_lshl_b32 s33, s33, 7")
    k("s_add_u32 s32, s32, s33")
    k(f"s_lshl_b32 s33, s{sW}, 5")
    k("s_add_u32 s32, s32, s33")
    k(f"s_add_u32 s{sOUT}, s32, 2048")
    for i in range(4): k(f"v_mov_b32 v{T0+i}, -1")
    for sl in range(2):
        for hf in range(2):
            k(f"s_add_u32 s33, s{sPRD}, {sl*0x100000 + hf*4096}")
            for i in range(4):
                k(f"buffer_store_dwordx4 {v(T0,4)}, v{aL}, {ws}, s33 offen offset:{i*1024} sc1")
    ft = k.vm_tag()
    def dma():
        for kp in range(8):
            k(f"s_add_u32 m0, s{sM0}, {kp*4096}")
            k(f"s_add_u32 s{sT0}, s{sXo}, {kp*128}")
            k(f"buffer_load_dwordx4 v{aDMA}, s[{S_B}:{S_B+3}], s{sT0} offen lds")
        k(f"s_add_u32 s{sXo}, s{sXo}, {NG2*32768}")
        k(f"s_xor_b32 s{sM0}, s{sM0}, 0x8000")
    k(f"s_lshl_b32 s{sXo}, s{sS}, 15")
    k(f"s_lshl_b32 s{sM0}, s{sW}, 10")
    dma()
    def hook():
        k.wait_vm(ft); arrive(k, T0+4)
    nt = opt.get("wflags", "")
    w_loader(k, S_A, oW, lambda kap, T, jd: ('a', wq(kap, T) + jd), nt, 16, T0+4, sSELLO, sSELHI, hook)
    tags = {}
    for gi in range(4 + 2):
        if gi < 4:
            b = 16 + (gi % 3)*32
            for jd in range(4):
                for p in range(2):
                    k(f"s_mov_b32 s33, {(32*gi + 2*jd + p) * 1024}")
                    k(f"buffer_load_dwordx4 {v(b + jd*8 + p*4, 4)}, v{oWO}, s[{S_D}:{S_D+3}], s33 offen {nt}")
            tags[gi] = k.vm_tag()
        gp = gi - 2
        if gp >= 0:
            k.wait_vm(tags[gp]); b = 16 + (gp % 3)*32
            for jd in range(4):
                for T in range(8):
                    k(f"v_perm_b32 v{T0+T}, v{b + jd*8 + 4 + (T>>1)}, v{b + jd*8 + (T>>1)}, s{sSELHI if T & 1 else sSELLO}")
                for T in range(8):
                    k(f"v_accvgpr_write_b32 a{wo(T, gp) + jd}, v{T0+T}")
    k(f"s_and_b32 s32, s{sW}, 1")
    k("s_lshl_b32 s32, s32, 4")
    k(f"v_add_u32 v{t1}, s32, v{C_}")
    k(f"v_lshlrev_b32 v{t2}, 2, v{G_}")
    k(f"v_sub_u32 v{t1}, v{t1}, v{t2}")
    wait_arrivals(k, T0, 0x7f, sFAST, fail)
    if opt.get("force_slow"): k(f"s_mov_b32 s{sFAST}, 0")
    for kt in range(2):
        for r in range(4):
            m = sMK + (kt*4 + r)*2
            k(f"v_cmp_le_i32 s[{m}:{m+1}], {16*kt + r}, v{t1}")
    aQ, aV, aOw, aQw = 9, 10, 11, T0+15
    k(f"s_and_b32 s32, s{sW}, 1")
    k("s_lshl_b32 s32, s32, 12")
    k(f"v_add_u32 v{aQ}, s32, v{aL}")
    k(f"s_lshr_b32 s33, s{sW}, 1")
    k("s_lshl_b32 s34, s33, 12")
    k(f"v_add_u32 v{aV}, s34, v{aL}")
    k(f"s_lshl_b32 s34, s33, 11")
    k(f"v_add_u32 v{aOw}, s34, v{aQ}")
    k(f"s_lshl_b32 s32, s{sW}, 10")
    k(f"v_add_u32 v{aQw}, s32, v{aL}")
    aVM = T0+14
    k(f"v_add_u32 v{aVM}, s34, v{aL}")
    aOr = T0+13
    for r_ in (aQ, aOw, aQw): k(f"v_add_u32 v{r_}, {hex(L_EX)}, v{r_}")
    k(f"v_add_u32 v{aOr}, {hex(L_EX)}, v{aL}")
    k(f"s_mov_b32 s{sT}, 0")
    k(f"s_mov_b32 s{sTAG}, 0")
    k(f"s_mov_b32 s{sKC}, 0")
    k(f"s_mov_b32 s{sCC}, 0")
    top = k.label("L_w2top")
    k(".p2align 6")
    k(f"{top}:")
    k("s_waitcnt vmcnt(0)")
    k("s_barrier")
    dma()
    k(f"s_add_u32 s{sT0+0}, s{sS}, 1")
    k(f"s_add_u32 s33, s{sFKV}, {32*256}")
    k(f"s_mov_b32 s34, s{sT0}")
    poll_flag(k, fail, [f"buffer_load_dword v{T0}, off, {ws}, s{sFKV} sc1", f"buffer_load_dword v{T0+1}, off, {ws}, s33 sc1"], 2, sKC, 34)
    k(f"s_add_u32 s32, s{sKo}, 4096")
    k(f"s_add_u32 s33, s{sKo}, {hex(VX - KX)}")
    for i in range(8):
        k(f"buffer_load_dwordx4 {v(KXF + 4*i, 4)}, v{aL}, {ws}, s{sKo if i < 4 else 32} offen offset:{(i & 3)*1024} sc1")
    for i in range(4):
        k(f"buffer_load_dwordx4 {v(VXF + 4*i, 4)}, v{aV}, {ws}, s33 offen offset:{i*1024} sc1")
    def rd(i):
        kap, rt = i >> 1, i & 1
        k(f"ds_read_b128 {v(XF + (i % 8)*4, 4)}, v{aX1 if kap & 1 else aX0} offset:{(kap >> 1)*4096 + rt*2048}")
        return k.ds_tag()
    tg = {}
    for i in range(6): tg[i] = rd(i)
    for kap in range(16):
        k.wait_ds(tg[2*kap + 1])
        for rt in range(2):
            for T in range(2):
                acc = v(QA + (rt*2 + T)*4, 4)
                k(f"{MF} {acc}, {a(wq(kap, T), 4)}, {v(XF + ((2*kap + rt) % 8)*4, 4)}, {'0' if kap == 0 else acc}")
                j = 2*kap + 6 + rt
                if T == 0 and j < 32: tg[j] = rd(j)
    k(f"v_xor_b32 v{aX0}, 0x8000, v{aX0}")
    k(f"v_xor_b32 v{aX1}, 0x8000, v{aX1}")
    k.nop(6)
    for u in range(2):
        for r in range(4):
            k(f"v_cvt_pk_bf16_f32 v{PK + u*4 + r}, v{QA + u*8 + r}, v{QA + u*8 + 4 + r}")
        k(f"ds_write_b128 v{aQw}, {v(PK + u*4, 4)} offset:{L_QO + u*4096}")
    k("s_waitcnt lgkmcnt(0)")
    k("s_barrier")
    for e in range(4):
        k(f"ds_read_b128 {v(QF + 4*e, 4)}, v{aQ} offset:{L_QO + e*1024}")
    k("s_waitcnt lgkmcnt(0) vmcnt(0)")
    S0, S1, SM_ = SS, SS+4, SS+8
    for kt in range(2):
        for e in range(4):
            acc = v(SS + 4*kt, 4)
            k(f"{MF} {acc}, {v(KXF + (kt*4 + e)*4, 4)}, {v(QF + 4*e, 4)}, {'0' if e == 0 else acc}")
    k(f"s_add_u32 s34, s{sS}, 1")
    poll_flag(k, fail, [f"buffer_load_dwordx4 {v(T0,4)}, off, {ws}, s{sFCH} sc1"], 4, sCC, 34)
    for e in range(4):
        for hf in range(2):
            k(f"buffer_load_dwordx2 {v(KMF + 4*e + 2*hf, 2)}, v{aKM}, {ws}, s{sKMo} offen offset:{(e >> 1)*1024 + (e & 1)*128 + hf*16} sc1")
    k(f"s_add_u32 s32, s{sKMo}, 4096")
    for i in range(2):
        k(f"buffer_load_dwordx4 {v(VMF + 4*i, 4)}, v{aVM}, {ws}, s32 offen offset:{i*1024} sc1")
    k.nop(4)
    for i in range(8):
        k(f"v_cndmask_b32 v{SS+i}, v{vNEG}, v{SS+i}, s[{sMK+2*i}:{sMK+2*i+1}]")
    mx, t2_, nm, l0, l1 = T0, T0+1, T0+2, T0+4, T0+5
    k(f"v_max3_f32 v{mx}, v{S0}, v{S0+1}, v{S0+2}")
    k(f"v_max3_f32 v{mx}, v{mx}, v{S0+3}, v{S1}")
    k(f"v_max3_f32 v{mx}, v{mx}, v{S1+1}, v{S1+2}")
    k(f"v_max_f32 v{mx}, v{mx}, v{S1+3}")
    k(f"v_mov_b32 v{P+5}, 0")
    k("s_waitcnt vmcnt(2)")
    for e in range(4):
        k(f"{MF} {v(SM_,4)}, {v(KMF + 4*e, 4)}, {v(QF + 4*e, 4)}, {'0' if e == 0 else v(SM_,4)}")
    k.nop(8)
    k(f"v_max3_f32 v{t2_}, v{mx}, v{SM_}, v{SM_+1}")
    k(f"v_max3_f32 v{mx}, v{mx}, v{SM_}, v{SM_+1}")
    k.nop(2)
    k(f"v_permlane16_swap_b32 v{mx}, v{t2_}")
    k(f"v_max_f32 v{nm}, v{mx}, v{t2_}")
    k(f"v_max_f32 v{mx}, v{mx}, v{t2_}")
    k.nop(2)
    k(f"v_permlane32_swap_b32 v{mx}, v{nm}")
    k(f"v_max_f32 v{mx}, v{mx}, v{nm}")
    k(f"v_mul_f32 v{nm}, s{sC}, v{mx}")
    for i in range(5):
        r = SS + 2*i
        k(f"v_pk_fma_f32 {v(r,2)}, {v(r,2)}, s[{sC}:{sC+1}], {v(nm,2)} op_sel_hi:[1,1,0] neg_lo:[0,0,1] neg_hi:[0,0,1]")
    for i in range(10): k(f"v_exp_f32 v{SS+i}, v{SS+i}")
    k("s_nop 0")
    for i in range(5): k(f"v_cvt_pk_bf16_f32 v{P+i}, v{SS+2*i}, v{SS+2*i+1}")
    k(f"v_pk_add_f32 {v(SS,2)}, {v(SS,2)}, {v(SS+2,2)}")
    k(f"v_pk_add_f32 {v(SS+4,2)}, {v(SS+4,2)}, {v(SS+6,2)}")
    k(f"v_pk_add_f32 {v(SS,2)}, {v(SS,2)}, {v(SS+8,2)}")
    k(f"v_pk_add_f32 {v(SS,2)}, {v(SS,2)}, {v(SS+4,2)}")
    k("s_waitcnt vmcnt(0)")
    for i in range(4):
        k(f"{MF} {v(O + 4*i, 4)}, {v(VXF + 4*i, 4)}, {v(P,4)}, 0")
    k(f"v_add_f32 v{l0}, v{SS}, v{SS+1}")
    k(f"v_add_f32 v{l1}, v{SS}, v{SS+1}")
    for i in range(4):
        k(f"v_mfma_f32_16x16x16_bf16 {v(O + 4*i, 4)}, {v(VMF + 2*i, 2)}, {v(P+4,2)}, {v(O + 4*i, 4)}")
    k(f"v_permlane16_swap_b32 v{l0}, v{l1}")
    k(f"v_add_f32 v{t2_}, v{l0}, v{l1}")
    k(f"v_add_f32 v{l1}, v{l0}, v{l1}")
    k.nop(2)
    k(f"v_permlane32_swap_b32 v{t2_}, v{l1}")
    k(f"v_add_f32 v{l0}, v{t2_}, v{l1}")
    k(f"v_rcp_f32 v{nm}, v{l0}")
    k.nop(2)
    for i in range(8):
        k(f"v_pk_mul_f32 {v(O+2*i,2)}, {v(O+2*i,2)}, {v(nm,2)} op_sel_hi:[1,0]")
    for u in range(2):
        for r in range(4):
            k(f"v_cvt_pk_bf16_f32 v{PK + u*4 + r}, v{O + u*8 + r}, v{O + u*8 + 4 + r}")
        k(f"ds_write_b128 v{aOw}, {v(PK + u*4, 4)} offset:{L_OO + u*1024}")
    k("s_waitcnt lgkmcnt(0)")
    k("s_barrier")
    to = {}
    for i in range(8):
        k(f"ds_read_b128 {v(OF + 4*i, 4)}, v{aOr} offset:{L_OO + i*1024}"); to[i] = k.ds_tag()
    def stores(qt):
        for r in range(4):
            b = SS if r & 1 else P
            for t_ in range(4):
                k(f"v_cvt_pk_bf16_f32 v{b + t_}, v{ACC + (qt*8 + 2*t_)*4 + r}, v{ACC + (qt*8 + 2*t_ + 1)*4 + r}")
            k(f"v_bfi_b32 v{b}, 1, s{sTAG}, v{b}")
            k(f"s_add_u32 s32, s{sPST}, {qt*32768 + r*8192}")
            sl = k.label("L_ps"); jn = k.label("L_pj")
            k(f"s_cmp_eq_u32 s{sFAST}, 0")
            k(f"s_cbranch_scc1 {sl}")
            k(f"buffer_store_dwordx4 {v(b,4)}, v{gPART}, {ws}, s32 offen")
            k(f"s_branch {jn}")
            k(f"{sl}:")
            k(f"buffer_store_dwordx4 {v(b,4)}, v{gPART}, {ws}, s32 offen sc1")
            k(f"{jn}:")
    for qt in range(2):
        k.wait_ds(to[qt*4 + 3])
        for T in range(8):
            for e in range(4):
                acc = v(ACC + (qt*8 + T)*4, 4)
                k(f"{MF} {acc}, {a(wo(T, e), 4)}, {v(OF + (qt*4 + e)*4, 4)}, {'0' if e == 0 else acc}")
            if qt == 1 and T == 1: stores(0)
    k.nop(8)
    stores(1)
    k(f"s_add_u32 s33, s{sPRD}, 4096")
    k(f"s_mov_b32 s{sSPIN}, {SPIN_LIMIT}")
    rl = k.label("L_w2red"); rok = k.label("L_w2rok")
    k(f"{rl}:")
    for i in range(8):
        k(f"buffer_load_dwordx4 {v(R + 4*i, 4)}, v{aL}, {ws}, s{sPRD if i < 4 else 33} offen offset:{(i & 3)*1024} sc1")
    k("s_mov_b64 exec, -1")
    k(f"s_sub_u32 s{sSPIN}, s{sSPIN}, 1")
    k(f"s_cbranch_scc1 {fail}")
    k("s_waitcnt vmcnt(0)")
    for i in range(4):
        k(f"v_bitop3_b32 v{T0+i}, v{R + 8*i}, v{R + 8*i + 4}, s{sTAG} bitop3:{hex(BITOP)}")
    k(f"v_or3_b32 v{T0}, v{T0}, v{T0+1}, v{T0+2}")
    k(f"v_or_b32 v{T0}, v{T0}, v{T0+3}")
    k(f"v_and_b32 v{T0}, 1, v{T0}")
    k(f"v_cmp_ne_u32 vcc, 0, v{T0}")
    k(f"s_cbranch_vccz {rok}")
    k("s_mov_b64 exec, vcc")
    k(f"s_branch {rl}")
    k(f"{rok}:")
    for i in range(8):
        k(f"{MF} {v(O,4)}, {v(SEL,4)}, {v(R + 4*i, 4)}, {'0' if i == 0 else v(O,4)}")
    k(f"s_xor_b32 s{sPST}, s{sPST}, 0x100000")
    k(f"s_xor_b32 s{sPRD}, s{sPRD}, 0x100000")
    k(f"s_add_u32 s{sT}, s{sT}, 1")
    k(f"s_lshr_b32 s{sTAG}, s{sT}, 1")
    k(f"s_and_b32 s{sTAG}, s{sTAG}, 1")
    k(f"s_add_u32 s{sS}, s{sS}, {NG2}")
    k(f"s_add_u32 s{sKo}, s{sKo}, {NG2*8192}")
    k(f"s_add_u32 s{sKMo}, s{sKMo}, {NG2*8192}")
    k("s_mov_b32 exec_hi, 0")
    k(f"buffer_store_dwordx4 {v(O,4)}, v{gOUT}, s[{S_C}:{S_C+3}], s{sOUT} offen")
    k("s_mov_b64 exec, -1")
    k(f"s_add_u32 s{sOUT}, s{sOUT}, {NG2*131072}")
    k(f"s_cmp_lt_u32 s{sS}, 64")
    k(f"s_cbranch_scc1 {top}")
    if opt.get("diag"):
        k("s_waitcnt vmcnt(0)")
        import gen; gen.wg_stamp(k, 2, T0)
    k("s_endpgm")
```

```python
import sys, json
from common import *
import chain
HEADER = open("concat_heads__ssm_conv_s5__memory_aug_recurrent_mem_tr__prompt.s.ref").read().split("; Override launch")[0]

def wg_stamp(k, slot, vt=250):
    k("s_memrealtime s[32:33]")
    k("s_waitcnt lgkmcnt(0)")
    k("s_lshl_b32 s34, s2, 6")
    k(f"s_add_u32 s34, s34, {hex(DIAG + 0x8000 + slot*4)}")
    k(f"v_mov_b32 v{vt}, s32")
    k(f"v_mov_b32 v{vt+1}, 0")
    k("s_mov_b64 s[36:37], exec")
    k("s_mov_b64 exec, 1")
    k(f"buffer_store_dword v{vt}, v{vt+1}, s[{S_WS}:{S_WS+3}], s34 offen")
    k("s_mov_b64 exec, s[36:37]")

def build(opt):
    k = Asm()
    k(f"{KNAME}:")
    k("s_cmp_ge_u32 s2, 256")
    k("s_cbranch_scc1 L_exit")
    k("s_load_dwordx16 s[64:79], s[0:1], 0")
    k("s_load_dwordx16 s[80:95], s[0:1], 64")
    k("s_load_dwordx4 s[96:99], s[0:1], 128")
    k("s_load_dwordx2 s[100:101], s[0:1], 144")
    k("v_lshrrev_b32 v1, 6, v0")
    k(f"s_and_b32 s{sG}, s2, 7")
    k(f"s_lshr_b32 s{sJ}, s2, 3")
    k(f"v_readfirstlane_b32 s{sW}, v1")
    k(f"s_getreg_b32 s{sXCC}, hwreg(HW_REG_XCC_ID, 0, 4)")
    k(f"s_and_b32 s{sXCC}, s{sXCC}, 7")
    k("s_waitcnt lgkmcnt(0)")
    srd(k, S_WS, P_WS, WS_BYTES)
    srd(k, S_DBG, P_DBG, 256)
    if opt.get("diag"): wg_stamp(k, 0)
    roles = opt.get("roles", ["chain"])
    k(f"s_cmp_eq_u32 s{sG}, 0")
    k("s_cbranch_scc1 L_chain" if "chain" in roles else "s_cbranch_scc1 L_exit")
    if "kv" in roles:
        k(f"s_cmp_le_u32 s{sG}, 2")
        k("s_cbranch_scc1 L_kv")
    if "a" in roles:
        k(f"s_cmp_eq_u32 s{sG}, 7")
        k("s_cbranch_scc1 L_parta")
    if "w2" in roles:
        k(f"s_cmp_ge_u32 s{sG}, 3")
        k(f"s_cselect_b32 s32, 1, 0")
        k(f"s_cmp_le_u32 s{sG}, 6")
        k(f"s_cselect_b32 s32, s32, 0")
        k("s_cmp_eq_u32 s32, 1")
        k("s_cbranch_scc1 L_w2")
    k("L_exit:")
    k("s_endpgm")
    k("L_fail:")
    k("s_mov_b64 exec, 1")
    k("v_mov_b32 v4, 0xdead")
    k("v_mov_b32 v5, 252")
    k(f"buffer_store_dword v4, v5, s[{S_DBG}:{S_DBG+3}], 0 offen")
    k("s_endpgm")
    if "chain" in roles:
        k("L_chain:")
        chain.emit_chain(k, opt, "L_fail")
    if "kv" in roles:
        import kv
        k("L_kv:")
        kv.emit(k, opt, "L_fail")
    if "w2" in roles:
        import w2
        k("L_w2:")
        w2.emit(k, opt, "L_fail")
    if "a" in roles:
        import parta
        k("L_parta:")
        parta.emit(k, opt, "L_fail")
    out = HEADER
    out += "; Generated by a Python script (own work): persistent kernel, one workgroup per CU, roles chosen by workgroup id.\n"
    out += "; @launch grid=(256,1,1) block=(256,1,1) lds=163840\n"
    out += f""".amdgcn_target "amdgcn-amd-amdhsa--gfx950"
.text
.globl {KNAME}
.p2align 8
.type {KNAME},@function
"""
    body = k.text().replace(f"    {KNAME}:", f"{KNAME}:")
    out += body
    out += f""".section .rodata,"a"
.p2align 6
.amdhsa_kernel {KNAME}
  .amdhsa_next_free_vgpr 512
  .amdhsa_next_free_sgpr 102
  .amdhsa_accum_offset 256
  .amdhsa_group_segment_fixed_size 0
  .amdhsa_kernarg_size 152
  .amdhsa_user_sgpr_count 2
  .amdhsa_user_sgpr_kernarg_segment_ptr 1
  .amdhsa_system_sgpr_workgroup_id_x 1
.end_amdhsa_kernel
"""
    return out

if __name__ == "__main__":
    opt = json.loads(sys.argv[2]) if len(sys.argv) > 2 else {}
    open(sys.argv[1], "w").write(build(opt))
```

```python
from common import *
import math
L_KX, L_MEM, L_QK, L_OX, L_SEL = 0x20000, 0x24000, 0x26000, 0x27000, 0x27800
PSLOT = 0x40000
X, Y, ZN, VA, SS, VXC, VXN, WV = 4, 36, 52, 84, 92, 104, 112, 128
aW, aMEM0, aL, aKXL, aQXw, aQF0, aQF1, aOXw = 120, 121, 122, 123, 124, 125, 126, 127
gPART, gPUB, vJNK, vIDX = 0, 1, 2, 3
sS, sMEM, sPST, sPRD, sPUB, sKo, sVo, sM0, sSELLO, sSELHI = 38, 39, 40, 44, 45, 46, 47, 48, 49, 50
sQKo, sVMo = 49, 50
sTAG = 3
BITOP = sum((((i>>2&1)^(i&1))|((i>>1&1)^(i&1))) << i for i in range(8))
sC, sMASK, sSPIN, sKC, sVC, sT0, sT1, sFAST, sNEED, sFKV, sFCH = 52, 54, 56, 57, 58, 59, 60, 61, 62, 63, 51
RES_L = [0, 1, 3, 4, 5, 7]
def qk_areg(lam, T): return (RES_L.index(lam) * 4 + T) * 8
def qk_lds(lam, T): return ((0 if lam == 2 else 1) * 4 + T) * 2048
WO_A = [(0, 0), (1, 0), (2, 0), (3, 0), (3, 1), (3, 2), (3, 3), (1, 1)]
WO_L = [(2, 1), (2, 2), (2, 3), (0, 1), (0, 2), (0, 3), (1, 2), (1, 3)]
def wo_areg(pr, i): return 192 + WO_A.index((pr, i)) * 8
def wo_lds(pr, i): return 16384 + WO_L.index((pr, i)) * 2048
def wv_reg(lam, T): return WV + (lam * 2 + T) * 8
SM = "v_smfmac_f32_16x16x64_bf16"
MF = "v_mfma_f32_16x16x32_bf16"

def nstamp(k, opt, name):
    if opt.get("diag") and name in opt.get("smap", {}): stamp(k, dict(opt, stamps=range(10)), opt["smap"][name])
def stamp(k, opt, i, drain=True):
    if not opt.get("diag") or i not in opt.get("stamps", range(7)): return
    lab = k.label("L_st")
    k(f"s_cmp_lg_u32 s{sS}, {opt['diag_step']}")
    k(f"s_cbranch_scc1 {lab}")
    k(f"s_memtime s[{64+2*i}:{65+2*i}]")
    k("s_waitcnt lgkmcnt(0)")
    k(f"{lab}:")

def kv_poll(k, fail):
    loop = k.label("L_kvp")
    k(f"s_min_u32 s{sNEED}, s{sNEED}, 64")
    k(f"s_mov_b32 s{sVC}, 0")
    k(f"s_add_u32 s{sT1}, s{sFKV}, {32*256}")
    k(f"{loop}:")
    k(f"buffer_load_dword v{SS+10}, off, s[{S_WS}:{S_WS+3}], s{sFKV} sc1")
    k(f"buffer_load_dword v{SS+11}, off, s[{S_WS}:{S_WS+3}], s{sT1} sc1")
    k(f"s_add_u32 s{sVC}, s{sVC}, 1")
    k(f"s_cmp_gt_u32 s{sVC}, {SPIN_LIMIT}")
    k(f"s_cbranch_scc1 {fail}")
    k("s_waitcnt vmcnt(0)")
    k(f"v_min_u32 v{SS+10}, v{SS+10}, v{SS+11}")
    k("s_nop 0")
    k(f"v_readfirstlane_b32 s{sKC}, v{SS+10}")
    k("s_nop 3")
    k(f"s_cmp_lt_u32 s{sKC}, s{sNEED}")
    k(f"s_cbranch_scc1 {loop}")
    k(f"s_cmp_ge_u32 s{sKC}, 64")
    k(f"s_cselect_b32 s{sKC}, 128, s{sKC}")
    k(f"s_sub_u32 s{sKC}, s{sKC}, 1")

def emit_setup(k, opt, fail):
    k.c("================= chain role: setup =================")
    srd(k, S_C, P_WV, 512*8192)
    srd(k, S_D, P_WO, 32*131072)
    srd(k, S_B, P_MEM0, 8192)
    k(f"s_cmp_lt_u32 s{sW}, 2")
    k(f"s_cselect_b32 s{S_A}, s{P_WQ}, s{P_WK}")
    k(f"s_cselect_b32 s{S_A+1}, s{P_WQ+1}, s{P_WK+1}")
    k(f"s_and_b32 s{S_A+1}, s{S_A+1}, 0xffff")
    k(f"s_mov_b32 s{S_A+2}, {hex(512*8192)}")
    k(f"s_mov_b32 s{S_A+3}, 0x20000")
    k(f"s_mov_b32 s{sSELLO}, 0x05040100")
    k(f"s_mov_b32 s{sSELHI}, 0x07060302")
    cval = 128 ** -0.5 * math.log2(math.e)
    import struct
    cb = struct.unpack("<I", struct.pack("<f", cval))[0]
    k(f"s_mov_b32 s{sC}, {hex(cb)}")
    k(f"s_mov_b32 s{sC+1}, {hex(cb)}")
    k(f"s_mov_b32 s{sMASK}, 0x000f000f")
    k(f"s_mov_b32 s{sMASK+1}, 0x000f000f")
    LN, C_, G_, t0, t1, t2 = 100, 101, 102, 103, 104, 105
    k(f"v_and_b32 v{LN}, 63, v0")
    k(f"v_and_b32 v{C_}, 15, v{LN}")
    k(f"v_lshrrev_b32 v{G_}, 4, v{LN}")
    k(f"v_lshlrev_b32 v{t0}, 4, v{LN}")
    k(f"s_lshl_b32 s32, s{sW}, 15")
    k(f"v_add_u32 v{aW}, s32, v{t0}")
    k(f"s_lshl_b32 s32, s{sW}, 11")
    k(f"s_add_u32 s32, s32, {hex(L_MEM)}")
    k(f"v_add_u32 v{aMEM0}, s32, v{t0}")
    k(f"v_add_u32 v{aL}, {hex(L_KX)}, v{t0}")
    k(f"v_mov_b32 v{aKXL}, v{aL}")
    k(f"s_lshr_b32 s32, s{sW}, 1")
    k("s_lshl_b32 s32, s32, 11")
    k(f"s_and_b32 s33, s{sW}, 1")
    k("s_lshl_b32 s33, s33, 10")
    k("s_add_u32 s32, s32, s33")
    k(f"s_add_u32 s32, s32, {hex(L_QK)}")
    k(f"v_lshrrev_b32 v{t1}, 1, v{C_}")
    k(f"v_lshlrev_b32 v{t2}, 7, v{t1}")
    k(f"v_add_u32 v{aQXw}, s32, v{t2}")
    k(f"v_lshlrev_b32 v{t2}, 1, v{G_}")
    k(f"v_xor_b32 v{t2}, v{t2}, v{t1}")
    k(f"v_lshlrev_b32 v{t2}, 4, v{t2}")
    k(f"v_add_u32 v{aQXw}, v{aQXw}, v{t2}")
    k(f"v_and_b32 v{t2}, 1, v{C_}")
    k(f"v_lshlrev_b32 v{t2}, 3, v{t2}")
    k(f"v_add_u32 v{aQXw}, v{aQXw}, v{t2}")
    k(f"v_lshrrev_b32 v{t1}, 2, v{C_}")
    k(f"v_lshlrev_b32 v{t1}, 1, v{t1}")
    k(f"v_and_b32 v{t2}, 1, v{C_}")
    k(f"v_add_u32 v{t1}, v{t1}, v{t2}")
    k(f"v_xor_b32 v{t2}, v{t1}, v{G_}")
    k(f"v_lshlrev_b32 v{t2}, 4, v{t2}")
    k(f"v_lshl_add_u32 v{t2}, v{G_}, 7, v{t2}")
    k(f"v_add_u32 v{aQF0}, {hex(L_QK)}, v{t2}")
    k(f"v_xor_b32 v{aQF1}, 576, v{aQF0}")
    k(f"s_lshl_b32 s32, s{sW}, 9")
    k(f"s_add_u32 s32, s32, {hex(L_OX)}")
    k(f"v_lshlrev_b32 v{t2}, 4, v{t1}")
    k(f"v_lshl_add_u32 v{t2}, v{G_}, 7, v{t2}")
    k(f"v_add_u32 v{aOXw}, s32, v{t2}")
    k(f"v_lshrrev_b32 v{t1}, 2, v{C_}")
    k(f"v_lshlrev_b32 v{t2}, 14, v{t1}")
    k(f"v_lshl_add_u32 v{t2}, v{G_}, 11, v{t2}")
    k(f"v_lshl_add_u32 v{t1}, v{t1}, 2, v{G_}")
    k(f"v_lshlrev_b32 v{t1}, 1, v{t1}")
    k(f"v_add_u32 v{t1}, s{sJ}, v{t1}")
    k(f"v_and_b32 v{t1}, 31, v{t1}")
    k(f"v_lshl_add_u32 v{t2}, v{t1}, 6, v{t2}")
    k(f"v_and_b32 v{t1}, 3, v{C_}")
    k(f"v_lshl_add_u32 v{t2}, v{t1}, 4, v{t2}")
    k(f"s_lshl_b32 s32, s{sW}, 16")
    k(f"v_add_u32 v{gPART}, s32, v{t2}")
    k(f"v_and_b32 v{t1}, 3, v{LN}")
    k(f"v_lshlrev_b32 v{t1}, 2, v{t1}")
    k(f"v_lshl_add_u32 v{gPUB}, v{G_}, 4, v{t1}")
    k(f"v_and_b32 v{t1}, 3, v{C_}")
    k(f"v_lshrrev_b32 v{t2}, 2, v{C_}")
    k(f"v_lshl_add_u32 v{t1}, v{t1}, 2, v{t2}")
    k(f"v_and_b32 v{t2}, 1, v{t1}")
    k(f"v_lshlrev_b32 v{t2}, 4, v{t2}")
    k(f"v_mov_b32 v106, 0x3f80")
    k(f"v_lshlrev_b32 v{t2}, v{t2}, v106")
    k(f"v_lshrrev_b32 v{t1}, 1, v{t1}")
    for i in range(4):
        k(f"v_cmp_eq_u32 vcc, {i}, v{t1}")
        k("s_nop 1")
        k(f"v_cndmask_b32 v{80+i}, 0, v{t2}, vcc")
    k(f"v_and_b32 v{t1}, 2, v{LN}")
    k(f"v_cmp_ne_u32 vcc, 0, v{t1}")
    k(f"v_mov_b32 v{t1}, 0x44444444")
    k(f"v_mov_b32 v{t2}, 0xeeeeeeee")
    k(f"v_cndmask_b32 v{vIDX}, v{t1}, v{t2}, vcc")
    dQK, dWV, dWO, oM0 = 92, 93, 94, 95
    rQK, rWV, rWO = 86, 88, 90
    k(f"s_lshl_b32 s32, s{sJ}, 8")
    k(f"v_lshrrev_b32 v{t1}, 3, v{LN}")
    k(f"v_and_b32 v{t2}, 7, v{LN}")
    k(f"v_lshlrev_b32 v{t2}, 4, v{t2}")
    k(f"v_lshl_add_u32 v{t1}, v{t1}, 13, v{t2}")
    k(f"s_and_b32 s33, s{sW}, 1")
    k("s_lshl_b32 s33, s33, 7")
    k("s_add_u32 s33, s33, s32")
    k(f"v_add_u32 v{dQK}, s33, v{t1}")
    k(f"v_lshrrev_b32 v{t1}, 2, v{LN}")
    k(f"v_and_b32 v{t2}, 3, v{LN}")
    k(f"v_lshlrev_b32 v{t2}, 4, v{t2}")
    k(f"v_lshl_add_u32 v{t1}, v{t1}, 13, v{t2}")
    k(f"s_lshl_b32 s33, s{sW}, 6")
    k("s_add_u32 s33, s33, s32")
    k(f"v_add_u32 v{dWV}, s33, v{t1}")
    k(f"v_lshlrev_b32 v{t1}, 10, v{G_}")
    k(f"v_lshl_add_u32 v{t1}, v{C_}, 4, v{t1}")
    k(f"s_lshl_b32 s32, s{sJ}, 17")
    k(f"s_lshl_b32 s33, s{sW}, 8")
    k("s_add_u32 s33, s33, s32")
    k(f"v_add_u32 v{dWO}, s33, v{t1}")
    sLB0, sLB1 = sKo, sVo
    k(f"s_lshl_b32 s{sLB0}, s{sW}, 15")
    k(f"s_lshl_b32 s{sLB1}, s{sW}, 13")
    k(f"s_add_u32 s{sLB1}, s{sLB1}, 0x20000")
    k(f"v_and_b32 v{t1}, 1, v{G_}")
    k(f"v_lshrrev_b32 v{t2}, 1, v{G_}")
    k(f"v_lshlrev_b32 v106, 4, v{t1}")
    k(f"v_lshl_add_u32 v106, v{t2}, 1, v106")
    k(f"v_lshlrev_b32 v107, 3, v{C_}")
    k(f"v_lshl_add_u32 v107, v106, 7, v107")
    k(f"v_add_u32 v{rQK}, s{sLB0}, v107")
    k(f"v_add_u32 v{rQK+1}, s{sLB1}, v107")
    k(f"v_lshlrev_b32 v107, 2, v{C_}")
    k(f"v_lshl_add_u32 v107, v106, 6, v107")
    k(f"v_add_u32 v{rWV}, s{sLB0}, v107")
    k(f"v_add_u32 v{rWV+1}, s{sLB1}, v107")
    k(f"v_lshlrev_b32 v106, 2, v{t1}")
    k(f"v_lshl_add_u32 v106, v{t2}, 3, v106")
    k(f"v_lshlrev_b32 v107, 4, v{C_}")
    k(f"v_lshl_add_u32 v107, v106, 8, v107")
    k(f"v_add_u32 v{rWO}, s{sLB0}, v107")
    k(f"v_add_u32 v{rWO+1}, s{sLB1}, v107")
    k(f"v_and_b32 v{t1}, 1, v{G_}")
    k(f"v_lshlrev_b32 v{t1}, 10, v{t1}")
    k(f"v_lshl_add_u32 v{t1}, v{t2}, 1, v{t1}")
    k(f"v_and_b32 v{t2}, 3, v{LN}")
    k(f"v_lshl_add_u32 v{t1}, v{t2}, 4, v{t1}")
    k(f"s_lshl_b32 s32, s{sW}, 11")
    k(f"s_lshr_b32 s33, s{sJ}, 1")
    k("s_lshl_b32 s33, s33, 6")
    k("s_add_u32 s32, s32, s33")
    k(f"s_and_b32 s33, s{sJ}, 1")
    k("s_lshl_b32 s33, s33, 2")
    k("s_add_u32 s32, s32, s33")
    k(f"v_add_u32 v{oM0}, s32, v{t1}")
    if opt.get("diag"):
        import gen; gen.wg_stamp(k, 3, 110)
    for i in range(4): k(f"v_mov_b32 v{72+i}, -1")
    k(f"v_mov_b32 v76, 0")
    k(f"v_lshlrev_b32 v77, 2, v{LN}")
    k(f"s_lshl_b32 s32, s{sJ}, 14")
    k(f"s_lshl_b32 s33, s{sW}, 12")
    k("s_add_u32 s32, s32, s33")
    k(f"s_add_u32 s33, s32, {hex(MEMB - L_KX)}")
    k(f"s_add_u32 s34, s32, {hex(PART - L_KX)}")
    k(f"s_mov_b32 s{sPST}, s33")
    k(f"s_mov_b32 s{sPST+1}, s34")
    k("s_lshr_b32 s32, s32, 1")
    k(f"s_add_u32 s{sPRD}, s32, {hex(PART - L_KX)}")
    k(f"s_lshl_b32 s{sFCH}, s{sJ}, 8")
    k(f"s_add_u32 s{sFKV}, s{sFCH}, {hex(F_KV)}")
    k(f"s_add_u32 s{sFCH}, s{sFCH}, {hex(F_CH)}")
    def prefill():
        for so in (sPST, sPST+1):
            for i in range(4):
                k(f"buffer_store_dwordx4 v[72:75], v{aL}, s[{S_WS}:{S_WS+3}], s{so} offen offset:{i*1024} sc1")
        k(f"buffer_store_dword v76, v77, s[{S_WS}:{S_WS+3}], s{sFCH} offen sc1")
        k(f"s_lshl_b32 s32, s{sW}, 2")
        k(f"s_add_u32 s{sFCH}, s{sFCH}, s32")
        return k.vm_tag()
    nt = opt.get("wflags", "")
    TMP, STG, PARK = 96, 104, 4
    k(f"s_lshl_b32 s{sT0}, s{sW}, 20")
    k(f"s_lshl_b32 s{sT1}, s{sW}, 15")
    def slot_m0(sl, i): return f"s_add_u32 m0, s{sLB0 if sl < 8 else sLB1}, {(sl % 8)*4096 + i*1024}"
    def sel(hi): return sSELHI if hi else sSELLO
    def rho(j4, p): return 8*(j4 >> 1) + (j4 & 1) + 4*(1 - p)
    parked = []
    def g_qk(lam, jq):
        def issue(sl):
            k(f"s_xor_b32 s32, s{sT0}, {hex(lam << 19)}")
            for i in range(4):
                k(slot_m0(sl, i)); k(f"s_add_u32 s33, s32, {(32*jq + 8*i) * 8192}")
                k(f"buffer_load_dwordx4 v{dQK}, s[{S_A}:{S_A+3}], s33 offen {nt} lds")
        def proc(sl):
            for j4 in range(4):
                for p in range(2):
                    k(f"ds_read_b64 {v(LDQ(j4, p), 2)}, v{rQK + (sl >= 8)} offset:{(sl % 8)*4096 + rho(j4, p)*128}")
            for j4 in range(4):
                k(f"s_waitcnt lgkmcnt({6 - 2*j4})")
                for T in range(4):
                    dst = TMP + T if lam in RES_L else PARK + len(parked)*16 + T*4 + j4
                    k(f"v_perm_b32 v{dst}, v{LDQ(j4, 1) + (T>>1)}, v{LDQ(j4, 0) + (T>>1)}, s{sel(T & 1)}")
                if lam in RES_L:
                    for T in range(4): k(f"v_accvgpr_write_b32 a{qk_areg(lam,T)+jq*4+j4}, v{TMP+T}")
            if lam not in RES_L: parked.append((lam, jq))
        return (issue, proc)
    def LDQ(j4, p): return STG + j4*4 + p*2
    def g_wv(lam):
        def issue(sl):
            k(f"s_xor_b32 s32, s{sT0}, {hex(lam << 19)}")
            for i in range(4):
                k(slot_m0(sl, i)); k(f"s_add_u32 s33, s32, {16*i * 8192}")
                k(f"buffer_load_dwordx4 v{dWV}, s[{S_C}:{S_C+3}], s33 offen {nt} lds")
        def proc(sl):
            for jj in range(8):
                for p in range(2):
                    k(f"ds_read_b32 v{STG + jj*2 + p}, v{rWV + (sl >= 8)} offset:{(sl % 8)*4096 + (32*(jj >> 2) + rho(jj & 3, p))*64}")
            for jj in range(8):
                if jj % 2 == 0: k(f"s_waitcnt lgkmcnt({12 - 2*jj})")
                for T in range(2):
                    k(f"v_perm_b32 v{wv_reg(lam,T)+jj}, v{STG + jj*2 + 1}, v{STG + jj*2}, s{sel(T)}")
        return (issue, proc)
    def g_wo(i_, jq):
        def issue(sl):
            k(f"s_xor_b32 s32, s{sT1}, {hex(i_ << 15)}")
            for i in range(4):
                k(slot_m0(sl, i)); k(f"s_add_u32 s33, s32, {(16*jq + 4*i) * 1024}")
                k(f"buffer_load_dwordx4 v{dWO}, s[{S_D}:{S_D+3}], s33 offen {nt} lds")
        def proc(sl):
            for u in range(2):
                for p in range(2):
                    k(f"ds_read_b128 {v(STG + u*8 + p*4, 4)}, v{rWO + (sl >= 8)} offset:{(sl % 8)*4096 + (2*u + p)*256}")
            k("s_waitcnt lgkmcnt(0)")
            for pr in range(4):
                b = TMP + (pr & 1)*4
                for u in range(2):
                    for hf in range(2):
                        k(f"v_perm_b32 v{b + u*2 + hf}, v{STG + u*8 + 4 + pr}, v{STG + u*8 + pr}, s{sel(hf)}")
                if (pr, i_) in WO_A:
                    for j in range(4): k(f"v_accvgpr_write_b32 a{wo_areg(pr,i_) + jq*4 + j}, v{b + j}")
                else:
                    k(f"ds_write_b128 v{aW}, {v(b, 4)} offset:{wo_lds(pr,i_) + jq*1024}")
            k("s_waitcnt lgkmcnt(0)")
        return (issue, proc)
    pieces = []
    qres = [g_qk(l, q) for l in RES_L for q in range(2)]
    wvp = [g_wv(l) for l in range(8)]
    for i in range(12):
        pieces.append(qres[i])
        if i % 3 == 0: pieces += [wvp[[0, 1, 4, 5][i // 3]], wvp[[2, 3, 6, 7][i // 3]]]
    pieces += [g_wo(i, q) for i in range(4) for q in range(2)]
    pieces += [g_qk(l, q) for l in (2, 6) for q in range(2)]
    free = list(range(opt.get("nslots", 10))); infl = []; pi = 0; arrived = False; fill_tag = None
    FILL_AT, ARR_AT = opt.get("fill_at", 0), opt.get("arr_at", 0)
    while pi < len(pieces) or infl:
        if fill_tag is None and pi == FILL_AT: fill_tag = prefill()
        ok = [s_ for s_ in free if pi < 20 or s_ not in (4, 5, 6, 7)] if pi < len(pieces) else []
        if ok:
            sl = ok[0]; free.remove(sl); pieces[pi][0](sl); infl.append((pi, sl, k.vm_tag(), not arrived)); pi += 1
            continue
        if not arrived and fill_tag is not None and infl[0][0] >= ARR_AT:
            k.wait_vm(fill_tag); arrive(k, 100); arrived = True
        p_, sl, tag, pre = infl.pop(0)
        k(f"s_waitcnt vmcnt({max(k.vm_seq - tag - (1 if (pre and arrived) else 0), 0)})")
        pieces[p_][1](sl); free.append(sl)
        if opt.get("diag2") and p_ in (0, 10, 20, 27):
            k(f"s_memrealtime s[{64 + 2*[0, 10, 20, 27].index(p_)}:{65 + 2*[0, 10, 20, 27].index(p_)}]"); k("s_waitcnt lgkmcnt(0)")
    assert arrived
    for n_, (lam, jq) in enumerate(parked):
        for T in range(4): k(f"ds_write_b128 v{aW}, {v(PARK + n_*16 + T*4, 4)} offset:{qk_lds(lam,T) + jq*1024}")
    k("s_barrier")
    k(f"ds_write_b128 v{aL}, v[80:83] offset:{L_SEL - L_KX}")
    k("s_waitcnt lgkmcnt(0)")
    if opt.get("diag"):
        import gen; gen.wg_stamp(k, 1, 4)
    wait_arrivals(k, 100, opt.get("chain_wait_mask", 0x07), sFAST, fail)
    k(f"buffer_load_ushort v{100}, v{oM0}, s[{S_B}:{S_B+3}], 0 offen offset:8")
    k(f"buffer_load_ushort v{101}, v{oM0}, s[{S_B}:{S_B+3}], 0 offen")
    k(f"s_lshl_b32 s32, s{sJ}, 8")
    k(f"s_lshl_b32 s33, s{sW}, 6")
    k("s_add_u32 s32, s32, s33")
    k(f"s_add_u32 s{sPUB}, s32, {hex(MEMB)}")
    k("s_waitcnt vmcnt(0)")
    k(f"v_lshl_or_b32 v100, v101, 16, v100")
    k(f"v_min_u32 v100, -2, v100")
    k(f"s_mov_b64 exec, s[{sMASK}:{sMASK+1}]")
    k(f"buffer_store_dword v100, v{gPUB}, s[{S_WS}:{S_WS+3}], s{sPUB} offen sc1")
    k("s_mov_b64 exec, -1")
    k(f"s_add_u32 s{sPUB}, s{sPUB}, 8192")
    k(f"s_mov_b32 s{sS}, 0")
    k(f"s_mov_b32 s{sTAG}, 0")
    k(f"s_mov_b32 s{sSPIN}, {SPIN_LIMIT}")
    k(f"s_mov_b32 s{sMEM}, {hex(MEMB - L_MEM)}")
    for i in range(2): k(f"s_mov_b32 s{sPST+i}, {hex(PART + i*8192)}")
    k(f"s_lshl_b32 s32, s{sJ}, 19")
    k(f"s_add_u32 s{sKo}, s32, {hex(KX - L_MEM)}")
    k(f"s_add_u32 s{sVo}, s32, {hex(VX - L_MEM)}")
    k(f"s_add_u32 s32, s32, {hex(KMVM)}")
    k(f"s_lshl_b32 s33, s{sW}, 10")
    k(f"s_add_u32 s32, s32, s33")
    k(f"s_sub_u32 s{sQKo}, s32, {hex(L_KX)}")
    k(f"s_add_u32 s{sVMo}, s{sQKo}, 4096")
    k(f"s_lshl_b32 s{sM0}, s{sW}, 11")
    k(f"s_add_u32 s{sM0}, s{sM0}, {hex(L_KX)}")
    k(f"s_mov_b32 s{sNEED}, 1")
    kv_poll(k, fail)
    ws = f"s[{S_WS}:{S_WS+3}]"
    k(f"s_mov_b32 m0, s{sM0}")
    k(f"buffer_load_dwordx4 {v(VXC,4)}, v{aMEM0}, {ws}, s{sVo} offen sc1")
    k(f"buffer_load_dwordx4 {v(VXC+4,4)}, v{aMEM0}, {ws}, s{sVo} offen offset:1024 sc1")
    k(f"buffer_load_dwordx4 v{aMEM0}, {ws}, s{sKo} offen sc1 lds")
    k(f"buffer_load_dwordx4 v{aMEM0}, {ws}, s{sKo} offen offset:1024 sc1 lds")
    k(f"s_add_u32 s{sKo}, s{sKo}, 8192")
    k(f"s_add_u32 s{sVo}, s{sVo}, 8192")
    k(f"s_xor_b32 s{sM0}, s{sM0}, 0x2000")
    for i in range(16): k(f"v_mov_b32 v{Y+i}, 0")
    for i in range(8): k(f"v_mov_b32 v{VA+i}, 0")
    for p in range(1, 4): k(f"v_xor_b32 v{SS+p}, {p<<11}, v{aMEM0}")
    k(f"v_mov_b32 v{SS+8}, 0")
    k(f"v_xor_b32 v{SS+9}, 16, v{aQXw}")
    for T in range(4):
        for hh in range(2):
            k(f"ds_read_b128 {v(ZN + T*8 + hh*4, 4)}, v{aW} offset:{qk_lds(2,T) + hh*1024}")
    for _ in range(opt.get("pdepth", 1)):
        k(f"buffer_load_dwordx4 {v(X,4)}, v{aMEM0}, {ws}, s{sMEM} offen sc1")
        k(f"buffer_load_dwordx4 {v(X+4,4)}, v{aMEM0}, {ws}, s{sMEM} offen offset:1024 sc1")
    k("s_waitcnt lgkmcnt(0)")
    if opt.get("diag"):
        k("s_mov_b32 s80, 0"); k("s_mov_b32 s82, 0")
        k("s_memrealtime s[90:91]")
        k("s_memtime s[84:85]")
        k("s_waitcnt lgkmcnt(0)")

def emit_loop(k, opt, fail, done, st):
    ws = f"s[{S_WS}:{S_WS+3}]"
    top = k.label("L_step"); retA = k.label("L_retA"); retB = k.label("L_retB"); okB = k.label("L_okB")
    kvs = k.label("L_kvs"); kvb = k.label("L_kvb")
    def qk(lam, T):
        B = a(qk_areg(lam, T), 8) if lam in RES_L else v(ZN + T*8, 8)
        k(f"{SM} {v(Y+4*T,4)}, {v(X+4*lam,4)}, {B}, v{vIDX}")
    def vp(lam, T):
        k(f"{SM} {v(VA+4*T,4)}, {v(X+4*lam,4)}, {v(wv_reg(lam,T),8)}, v{vIDX}")
    def rdw(dst, off): k(f"ds_read_b128 {v(dst,4)}, v{aW} offset:{off}")
    def pollA():
        k(f"buffer_load_dwordx4 {v(X,4)}, v{aMEM0}, {ws}, s{sMEM} offen sc1")
        k(f"buffer_load_dwordx4 {v(X+4,4)}, v{aMEM0}, {ws}, s{sMEM} offen offset:1024 sc1")
    def zero2(r): k(f"v_mov_b64 {v(r,2)}, 0")
    def add(d, x, y): k(f"v_add_f32 v{d}, v{x}, v{y}")
    def cvt(d, x, y): k(f"v_cvt_pk_bf16_f32 v{d}, v{x}, v{y}")
    PD = opt.get("pdepth", 1)
    def front(lastv, lab_top, lab_ret):
        k(f"s_branch {lab_top}")
        k(".p2align 6")
        k(f"{lab_ret}:")
        k("s_mov_b64 exec, vcc"); pollA(); k("s_mov_b64 exec, -1")
        if opt.get("cnt"): k("s_add_u32 s80, s80, 1")
        k(f"s_sub_u32 s{sSPIN}, s{sSPIN}, 1")
        k(f"s_cbranch_scc1 {fail}")
        k(f"{lab_top}:")
        if not opt.get("nowait"): k("s_waitcnt vmcnt(0)")
        k(f"v_max3_u32 v{SS}, v{X}, v{X+1}, v{X+2}")
        k(f"v_max3_u32 v{SS+10}, v{X+3}, v{X+4}, v{X+5}")
        k(f"v_max3_u32 v{SS}, v{SS}, v{X+6}, v{X+7}")
        k(f"v_max_u32 v{SS}, v{SS}, v{SS+10}")
        k(f"v_cmp_eq_u32 vcc, -1, v{SS}")
        if not opt.get("nocheck"): k(f"s_cbranch_vccnz {lab_ret}")
        k(f"ds_write_b128 v{aMEM0}, {v(X,4)}")
        k(f"ds_write_b128 v{aMEM0}, {v(X+4,4)} offset:1024")
        if not lastv: stamp(k, opt, 0)
        L = not lastv
        KV = L and not opt.get("nokv")
        qk(0, 0)
        if L: k(f"s_cmp_ge_u32 s{sS}, s{sKC}")
        qk(0, 1)
        if L:
            k(f"s_cbranch_scc1 {kvs}")
            k(f"{kvb}:")
        qk(0, 2)
        if KV: k(f"buffer_load_dwordx4 {v(VXN,4)}, v{aMEM0}, {ws}, s{sVo} offen sc1")
        qk(0, 3)
        k("s_waitcnt lgkmcnt(0)")
        k("s_barrier")
        if not lastv: stamp(k, opt, 1)
        tg = {}
        seq = [(1, 0), (1, 1), (1, 2), (1, 3)]
        for i, lam in enumerate(range(2, 8)):
            k(f"ds_read_b128 {v(X+4*lam,4)}, v{SS+(lam>>1)} offset:{(lam&1)*1024}")
            tg[lam] = k.ds_tag()
            if i < 4: qk(*seq[i])
        zr = [(T, hh) for T in range(4) for hh in range(2)]
        def zread(i): T, hh = zr[i]; rdw(ZN + T*8 + hh*4, qk_lds(6, T) + hh*1024)
        if L: k(f"s_mov_b32 m0, s{sM0}")
        k.wait_ds(tg[2])
        qk(2, 0)
        if KV: k(f"buffer_load_dwordx4 {v(VXN+4,4)}, v{aMEM0}, {ws}, s{sVo} offen offset:1024 sc1")
        tvx = k.vm_tag()
        qk(2, 1); zread(0)
        qk(2, 2)
        if KV: k(f"buffer_load_dwordx4 v{aMEM0}, {ws}, s{sKo} offen sc1 lds")
        qk(2, 3); k.wait_ds(tg[7])
        qk(3, 0)
        if KV: k(f"buffer_load_dwordx4 v{aMEM0}, {ws}, s{sKo} offen offset:1024 sc1 lds")
        qk(3, 1); zread(1); qk(3, 2); zread(2); qk(3, 3); zread(3)
        qk(4, 0); zread(4); qk(4, 1); zread(5); qk(4, 2); zread(6); qk(4, 3); zread(7); tz = k.ds_tag()
        qk(5, 0)
        if not opt.get("novpub"): k(f"buffer_store_dword v{SS+8}, off, {ws}, s{sFCH} sc1")
        qk(5, 1)
        if L and not opt.get("nopf"): k(f"s_add_u32 s{sT0}, s{sPUB}, 8192")
        qk(5, 2)
        if L and not opt.get("nopf"): k(f"buffer_load_dword v{vJNK}, v{gPUB}, {ws}, s{sT0} offen sc1")
        qk(5, 3)
        qk(7, 0); qk(7, 1); qk(7, 2); qk(7, 3)
        k.wait_ds(tz)
        qk(6, 0); k("s_nop 0")
        qk(6, 1); k("s_nop 0")
        qk(6, 2); k(f"ds_read_b128 {v(ZN,4)}, v{aKXL}" if L else "s_nop 0")
        qk(6, 3); k(f"ds_read_b128 {v(ZN+4,4)}, v{aKXL} offset:1024" if L else "s_nop 0")
        if L: stamp(k, opt, 9)
        vp(0, 0); add(Y, Y, Y+2)
        vp(0, 1); add(Y+1, Y+1, Y+3)
        add(Y+2, Y+4, Y+6); add(Y+3, Y+5, Y+7)
        add(Y+8, Y+8, Y+10); add(Y+9, Y+9, Y+11)
        cvt(Y+4, Y, Y+2); cvt(Y+6, Y+1, Y+3)
        add(Y+10, Y+12, Y+14); add(Y+11, Y+13, Y+15)
        cvt(Y+5, Y+8, Y+10)
        if L: k(f"ds_write_b64 v{aQXw}, {v(Y+4,2)}")
        cvt(Y+7, Y+9, Y+11)
        if L: k(f"ds_write_b64 v{SS+9}, {v(Y+6,2)}")
        vp(1, 0)
        if not opt.get("novpub"): k(f"buffer_store_dwordx4 {v(Y+4,4)}, v{aL}, {ws}, s{sQKo} offen sc1")
        vp(1, 1)
        return tvx
    tvx = front(False, top, retA)
    k(f"ds_read_b128 {v(ZN+8,4)}, v{aKXL} offset:2048")
    vp(2, 0); k(f"ds_read_b128 {v(ZN+12,4)}, v{aKXL} offset:3072")
    vp(2, 1)
    k("s_waitcnt lgkmcnt(2)")
    k("s_barrier")
    stamp(k, opt, 2)
    rest = [(l, T) for l in range(3, 8) for T in range(2)]
    for e in range(4):
        k(f"ds_read_b128 {v(Y+4*e,4)}, v{aQF1 if e&1 else aQF0} offset:{(e>>1)*1024}")
        vp(*rest[e])
    tqf = k.ds_tag()
    for e in range(4):
        k(f"ds_read_b128 {v(X+4*e,4)}, v{aKXL} offset:{4096 + e*1024}")
        vp(*rest[4+e])
    tkx1 = k.ds_tag()
    vp(*rest[8]); k.wait_ds(tqf); vp(*rest[9])
    S0, S1, SM_ = SS, SS+4, SS+8
    mx, t2, nm, l0, l1 = X+10, X+11, X+12, X+13, X+14
    nstamp(k, opt, "a")
    for e in range(4):
        k(f"{MF} {v(S0,4)}, {v(ZN+4*e,4)}, {v(Y+4*e,4)}, {'0' if e==0 else v(S0,4)}")
        k(f"ds_read_b128 {v(X+16+4*e,4)}, v{aQF1 if e&1 else aQF0} offset:{2048 + (e>>1)*1024}")
        if e == 3: tkf = k.ds_tag(); k.wait_ds(tkx1)
    ZS = {(2, 3): ZN+16, (0, 1): ZN+24, (2, 1): ZN, (2, 2): ZN+8, (0, 2): X, (0, 3): X+8, (1, 2): ZN, (1, 3): ZN+8}
    wq = [(ZS[f_] + 4*h_, wo_lds(*f_) + 1024*h_) for f_ in ((2, 3), (0, 1), (2, 1), (2, 2)) for h_ in range(2)]
    def wnext():
        if wq: rdw(*wq.pop(0))
    for e in range(4):
        k(f"{MF} {v(S1,4)}, {v(X+4*e,4)}, {v(Y+4*e,4)}, {'0' if e==0 else v(S1,4)}")
        add(VA+e, VA+(e&1)+4*(e>>1), VA+2+(e&1)+4*(e>>1))
        if e == 3: k.wait_ds(tkf)
        else: wnext()
    fill = [[f"v_cvt_pk_bf16_f32 v{VA+4}, v{VA}, v{VA+1}"],
            [f"v_cvt_pk_bf16_f32 v{VA+5}, v{VA+2}, v{VA+3}"],
            [f"v_max3_f32 v{mx}, v{S0}, v{S0+1}, v{S0+2}"],
            [f"v_max3_f32 v{t2}, v{S1+1}, v{S1+2}, v{S1+3}"]]
    for e in range(4):
        k(f"{MF} {v(SM_,4)}, {v(X+16+4*e,4)}, {v(Y+4*e,4)}, {'0' if e==0 else v(SM_,4)}")
        for f_ in fill[e]: k(f_)
        wnext()
    P, PM = X, X+4
    nstamp(k, opt, "b")
    k(f"v_max3_f32 v{mx}, v{mx}, v{S0+3}, v{S1}")
    cvt(VA+6, VA+2, VA+3); cvt(VA+7, VA, VA+1)
    k(f"v_max_f32 v{mx}, v{mx}, v{t2}")
    k(f"v_mov_b32 v{PM+1}, 0")
    wnext()
    if not opt.get("novpub"): k(f"buffer_store_dwordx4 {v(VA+4,4)}, v{aL}, {ws}, s{sVMo} offen sc1")
    else: k("s_nop 0")
    k(f"s_add_u32 s{sKo}, s{sKo}, 8192")
    k(f"v_max3_f32 v{t2}, v{mx}, v{SM_}, v{SM_+1}")
    k(f"v_max3_f32 v{mx}, v{mx}, v{SM_}, v{SM_+1}")
    zero2(Y); zero2(Y+2)
    k(f"v_permlane16_swap_b32 v{mx}, v{t2}")
    k(f"v_max_f32 v{nm}, v{mx}, v{t2}")
    k(f"v_max_f32 v{mx}, v{mx}, v{t2}")
    zero2(Y+4); zero2(Y+6)
    k(f"v_permlane32_swap_b32 v{mx}, v{nm}")
    k(f"v_max_f32 v{mx}, v{mx}, v{nm}")
    k(f"v_mul_f32 v{nm}, s{sC}, v{mx}")
    for i in range(5):
        r = SS + 2*i
        k(f"v_pk_fma_f32 {v(r,2)}, {v(r,2)}, s[{sC}:{sC+1}], {v(nm,2)} op_sel_hi:[1,1,0] neg_lo:[0,0,1] neg_hi:[0,0,1]")
    for i in range(10):
        k(f"v_exp_f32 v{SS+i}, v{SS+i}")
        if i in (3, 5, 7, 9): k(f"v_cvt_pk_bf16_f32 v{P+(i-3)//2}, v{SS+i-3}, v{SS+i-2}")
    O = X+16
    nstamp(k, opt, "c")
    k(f"v_pk_add_f32 {v(SS,2)}, {v(SS,2)}, {v(SS+2,2)}")
    k(f"v_cvt_pk_bf16_f32 v{PM}, v{SS+8}, v{SS+9}")
    k(f"{MF} {v(O,4)}, {v(VXC,4)}, {v(P,4)}, 0")
    add(SS+4, SS+4, SS+6); add(SS+5, SS+5, SS+7)
    k(f"{MF} {v(O+4,4)}, {v(VXC+4,4)}, {v(P,4)}, 0")
    add(SS, SS, SS+8); add(SS+1, SS+1, SS+9)
    k(f"v_mfma_f32_16x16x16_bf16 {v(O,4)}, {v(VA+4,2)}, {v(PM,2)}, {v(O,4)}")
    add(SS+4, SS+4, SS+5); add(SS, SS, SS+1)
    k(f"v_mfma_f32_16x16x16_bf16 {v(O+4,4)}, {v(VA+6,2)}, {v(PM,2)}, {v(O+4,4)}")
    add(l0, SS, SS+4); add(l1, SS, SS+4)
    k(f"s_add_u32 s{sS}, s{sS}, 1")
    zero2(Y+8)
    k(f"v_permlane16_swap_b32 v{l0}, v{l1}")
    add(t2, l0, l1); add(l1, l0, l1)
    zero2(Y+10); zero2(Y+12)
    k(f"v_permlane32_swap_b32 v{t2}, v{l1}")
    add(l0, t2, l1)
    k(f"v_rcp_f32 v{nm}, v{l0}")
    zero2(Y+14)
    for i in range(4):
        k(f"v_pk_mul_f32 {v(O+2*i,2)}, {v(O+2*i,2)}, {v(nm,2)} op_sel_hi:[1,0]")
    OP = X+24
    for r in range(4):
        k(f"v_cvt_pk_bf16_f32 v{OP+r}, v{O+r}, v{O+4+r}")
    nstamp(k, opt, "d")
    k(f"ds_write_b128 v{aOXw}, {v(OP,4)}")
    tw = k.ds_tag()
    OF = [OP, VXC, VXC+4, X+28]
    def op(pr, i):
        B = a(wo_areg(pr, i), 8) if (pr, i) in WO_A else v(ZS[(pr, i)], 8)
        k(f"{SM} {v(Y+4*pr,4)}, {v(OF[i],4)}, {B}, v{vIDX}")
    CH = {2: VA, 0: VA+2, 3: VA+4, 1: VA+6}
    def f(pr, hf): cvt(CH[pr] + hf, Y + 4*pr + 2*hf, Y + 4*pr + 2*hf + 1)
    def pst(sg): k(f"buffer_store_dwordx4 {v(VA+4*sg,4)}, v{gPART}, {ws}, s{sPST+sg} offen {st}")
    k(f"v_xor_b32 v{SS+1}, {1<<9}, v{aOXw}")
    op(2, 0); k(f"v_xor_b32 v{SS+2}, {2<<9}, v{aOXw}")
    op(0, 0); k(f"v_xor_b32 v{SS+3}, {3<<9}, v{aOXw}")
    op(3, 0); k(f"s_add_u32 s{sMEM}, s{sMEM}, 8192")
    op(1, 0); k(f"s_add_u32 s{sVMo}, s{sVMo}, {KMVM_BLK}")
    k.wait_ds(tw)
    k("s_barrier")
    stamp(k, opt, 3)
    to = {}
    for i in range(1, 4):
        k(f"ds_read_b128 {v(OF[i],4)}, v{SS+i}"); to[i] = k.ds_tag()
    for h_ in range(4): rdw(X + 4*h_, wo_lds(0, 2 + (h_ >> 1)) + (h_ & 1)*1024)
    tx = k.ds_tag()
    k(f"v_mov_b32 v{SS+8}, s{sS}")
    k(f"v_xor_b32 v{aKXL}, 0x2000, v{aKXL}")
    k(f"v_xor_b32 v{SS+9}, 16, v{aQXw}")
    k.wait_ds(to[1])
    nstamp(k, opt, "e")
    op(2, 1)
    op(0, 1); k.wait_ds(to[2])
    op(2, 2); rdw(ZN, wo_lds(1, 2)); k.wait_ds(tx)
    op(0, 2); rdw(ZN+4, wo_lds(1, 2) + 1024)
    op(2, 3); rdw(ZN+8, wo_lds(1, 3))
    op(0, 3); rdw(ZN+12, wo_lds(1, 3) + 1024); tj = k.ds_tag()
    op(3, 1); k(f"v_xor_b32 v{SS+1}, {1<<11}, v{aMEM0}")
    op(1, 1); k(f"v_xor_b32 v{SS+2}, {2<<11}, v{aMEM0}")
    op(3, 2); k.wait_ds(tj); f(2, 0); f(2, 1); f(0, 0); f(0, 1)
    k(f"v_bfi_b32 v{VA}, 1, s{sTAG}, v{VA}")
    op(1, 2); pst(0)
    op(3, 3); k(f"v_xor_b32 v{SS+3}, {3<<11}, v{aMEM0}")
    op(1, 3); nstamp(k, opt, "f")
    k(f"ds_read_b128 {v(SS+4,4)}, v{aL} offset:{L_SEL - L_KX}"); tsel = k.ds_tag()
    for hh in range(4): rdw(ZN + 16 + hh*4, qk_lds(2, 2 + (hh >> 1)) + (hh & 1)*1024)
    k(f"s_xor_b32 s{sM0}, s{sM0}, 0x2000")
    f(3, 0); f(3, 1)
    k(f"v_bfi_b32 v{VA+4}, 1, s{sTAG}, v{VA+4}")
    f(1, 0); f(1, 1)
    pst(1)
    stamp(k, opt, 4)
    R = X+16; D = X+8
    def pollB():
        for i in range(2):
            k(f"buffer_load_dwordx4 {v(R+4*i,4)}, v{aL}, {ws}, s{sPRD} offen offset:{i*1024} sc1")
    for T in range(2):
        for hh in range(2): rdw(ZN + T*8 + hh*4, qk_lds(2, T) + hh*1024)
    k(f"s_mov_b32 s{sSPIN}, {SPIN_LIMIT}")
    k(f"s_add_u32 s{sVo}, s{sVo}, 8192")
    k(f"s_add_u32 s{sQKo}, s{sQKo}, {KMVM_BLK}")
    k.nop(opt.get("delayB", 0))
    pollB()
    for i in range(4): zero2(VA+2*i)
    for i in range(8): zero2(Y+2*i)
    k.wait_vm(tvx)
    for i in range(4): k(f"v_mov_b64 {v(VXC+2*i,2)}, {v(VXN+2*i,2)}")
    k.wait_ds(tsel)
    k(f"s_branch {okB}")
    k(".p2align 6")
    k(f"{retB}:")
    k("s_mov_b64 exec, vcc"); pollB(); k("s_mov_b64 exec, -1")
    if opt.get("cnt"): k("s_add_u32 s82, s82, 1")
    k(f"s_sub_u32 s{sSPIN}, s{sSPIN}, 1")
    k(f"s_cbranch_scc1 {fail}")
    k(f"{okB}:")
    if not opt.get("nowait"): k("s_waitcnt vmcnt(0)")
    k(f"v_bitop3_b32 v{SS}, v{R}, v{R+4}, s{sTAG} bitop3:{hex(BITOP)}")
    k(f"{MF} {v(D,4)}, {v(SS+4,4)}, {v(R,4)}, 0")
    k(f"v_and_b32 v{SS}, 1, v{SS}")
    k(f"{MF} {v(D,4)}, {v(SS+4,4)}, {v(R+4,4)}, {v(D,4)}")
    k(f"v_cmp_ne_u32 vcc, 0, v{SS}")
    if not opt.get("nocheck"): k(f"s_cbranch_vccnz {retB}")
    stamp(k, opt, 5)
    k(f"s_mov_b32 s{sSPIN}, {SPIN_LIMIT}")
    k(f"s_xor_b32 s{sTAG}, s{sTAG}, 1")
    k.nop(4)
    k(f"v_add_f32_dpp v{D}, v{D}, v{D} row_ror:4 row_mask:0xf bank_mask:0xf")
    k(f"v_add_f32_dpp v{D+1}, v{D+1}, v{D+1} row_ror:4 row_mask:0xf bank_mask:0xf")
    k("s_nop 0")
    k(f"v_add_f32_dpp v{D}, v{D}, v{D} row_ror:8 row_mask:0xf bank_mask:0xf")
    k(f"v_add_f32_dpp v{D+1}, v{D+1}, v{D+1} row_ror:8 row_mask:0xf bank_mask:0xf")
    k(f"s_mov_b64 exec, s[{sMASK}:{sMASK+1}]")
    cvt(SS, D, D+1)
    k(f"v_min_u32 v{SS}, -2, v{SS}")
    k(f"buffer_store_dword v{SS}, v{gPUB}, {ws}, s{sPUB} offen {st}")
    k("s_mov_b64 exec, -1")
    stamp(k, opt, 6)
    k(f"s_add_u32 s{sPUB}, s{sPUB}, 8192")
    k.nop(opt.get("delayA", 0))
    pollA()
    k("s_waitcnt lgkmcnt(0)")
    k(f"s_cmp_lt_u32 s{sS}, 63")
    k(f"s_cbranch_scc1 {top}")
    top2 = k.label("L_fin"); retA2 = k.label("L_retA2")
    front(True, top2, retA2)
    for l in range(2, 8):
        for T in range(2): vp(l, T)
    k.nop(8)
    for e in range(4): add(VA+e, VA+(e&1)+4*(e>>1), VA+2+(e&1)+4*(e>>1))
    cvt(VA+4, VA, VA+1); cvt(VA+5, VA+2, VA+3); cvt(VA+6, VA+2, VA+3); cvt(VA+7, VA, VA+1)
    k(f"buffer_store_dwordx4 {v(VA+4,4)}, v{aL}, {ws}, s{sVMo} offen sc1")
    k(f"v_mov_b32 v{SS+8}, 64")
    k("s_waitcnt vmcnt(0)")
    k(f"buffer_store_dword v{SS+8}, off, {ws}, s{sFCH} sc1")
    k(f"s_branch {done}")
    k(f"{kvs}:")
    k(f"s_add_u32 s{sNEED}, s{sS}, 2")
    kv_poll(k, fail)
    k(f"s_branch {kvb}")

def emit_chain(k, opt, fail):
    emit_setup(k, opt, fail)
    slow = k.label("L_slow"); done = k.label("L_chdone")
    if opt.get("force_slow"): k(f"s_mov_b32 s{sFAST}, 0")
    k(f"s_cmp_eq_u32 s{sFAST}, 0")
    k(f"s_cbranch_scc1 {slow}")
    emit_loop(k, opt, fail, done, "")
    k(f"{slow}:")
    emit_loop(k, opt, fail, done, "sc1")
    k(f"{done}:")
    if opt.get("dbgstamp"):
        import gen; gen.wg_stamp(k, 2, 4)
    if opt.get("diag"):
        k("s_memtime s[86:87]")
        k("s_memrealtime s[88:89]")
        k("s_waitcnt lgkmcnt(0)")
        k(f"s_lshl_b32 s32, s{sJ}, 2")
        k(f"s_add_u32 s32, s32, s{sW}")
        k("s_lshl_b32 s32, s32, 7")
        k(f"s_add_u32 s32, s32, {hex(DIAG)}")
        k("v_mov_b32 v5, 0")
        k("s_mov_b64 exec, 1")
        for i in range(13):
            k(f"v_mov_b32 v4, s{64+2*i}")
            k(f"buffer_store_dword v4, v5, s[{S_WS}:{S_WS+3}], s32 offen offset:{4*i}")
        k("v_mov_b32 v4, s90")
        k(f"buffer_store_dword v4, v5, s[{S_WS}:{S_WS+3}], s32 offen offset:56")
        k(f"v_mov_b32 v4, s{sFAST}")
        k(f"buffer_store_dword v4, v5, s[{S_WS}:{S_WS+3}], s32 offen offset:52")
    k("s_endpgm")
```

```python
from common import *
import math, struct
def f2u(x): return hex(struct.unpack("<I", struct.pack("<f", x))[0])
aD0, aD1, aX0, aX1, aEW, aER, aHW, aHR, gH, vOWN = 1, 2, 3, 4, 5, 6, 7, 8, 9, 10
LR, LI, L8R, L8I, CR, CI, HR, HI = range(12, 20)
XF, ACC, EB, ZR, ZI, GR, GI, TT, PKD, DS4, XD = 20, 52, 68, 100, 101, 102, 103, 104, 108, 116, 120
gY, gXD, aD2 = 124, 125, 126
sB, sXo, sM0, sHo, sFA, sFAST, sSPIN, sT0, sSELLO, sSELHI, sAC, sQ, sYo, sXD, sWB = range(38, 53)
L_E, L_H = 0x20000, 0x21000

def emit(k, opt, fail):
    ws = f"s[{S_WS}:{S_WS+3}]"
    k.c("================= S5 role =================")
    srd(k, S_A, P_BRE, 512*1024)
    srd(k, S_B, P_BIM, 512*1024)
    srd(k, S_C, P_CRE, 512*1024)
    srd(k, S_D, P_CIM, 512*1024)
    k(f"s_mov_b32 s{sSELLO}, 0x05040100")
    k(f"s_mov_b32 s{sSELHI}, 0x07060302")
    LN, C_, G_, t1, t2, oB, oC = 240, 241, 242, 243, 244, 245, 246
    lane_split(k, LN, C_, G_)
    k(f"s_lshl_b32 s{sFA}, s{sJ}, 2")
    k(f"s_add_u32 s{sFA}, s{sFA}, {hex(F_A)}")
    k(f"v_mov_b32 v{TT}, 0")
    k(f"buffer_store_dword v{TT}, off, {ws}, s{sFA} sc1")
    k(f"v_lshlrev_b32 v{t1}, 10, v{C_}")
    k(f"v_lshl_add_u32 v{t1}, v{G_}, 4, v{t1}")
    k(f"s_lshl_b32 s32, s{sJ}, 14")
    k(f"v_add_u32 v{oB}, s32, v{t1}")
    for kap in range(16):
        for T in range(2):
            sr = S_B if T else S_A
            k(f"buffer_load_dwordx4 {a((kap*2+T)*4, 4)}, v{oB}, s[{sr}:{sr+3}], 0 offen offset:{kap*64}")
    k("s_waitcnt vmcnt(32)")
    arrive(k, TT)
    k(f"s_lshl_b32 s32, s{sJ}, 5")
    k(f"v_lshl_add_u32 v{t1}, v{C_}, 1, s32")
    for i, p in enumerate((P_LRE, P_LIM, P_LOGDT)):
        k(f"global_load_ushort v{TT+i}, v{t1}, s[{p}:{p+1}]")
    k(f"s_lshr_b32 s32, s{sJ}, 2")
    k("s_lshl_b32 s32, s32, 7")
    k(f"s_lshl_b32 s33, s{sW}, 5")
    k(f"s_add_u32 s{sWB}, s32, s33")
    k(f"v_lshl_add_u32 v{t2}, v{G_}, 3, s{sWB}")
    k(f"global_load_dwordx2 {v(XD,2)}, v{t2}, s[{P_DSKIP}:{P_DSKIP+1}]")
    k(f"v_lshlrev_b32 v{t1}, 10, v{C_}")
    k(f"v_lshl_add_u32 v{t1}, v{G_}, 3, v{t1}")
    k(f"s_lshl_b32 s32, s{sWB}, 9")
    k(f"v_add_u32 v{oC}, s32, v{t1}")
    tags = {}
    D = 6
    for gi in range(8 + D - 1):
        if gi < 8:
            b = 128 + (gi % D)*16
            for q in range(4):
                k(f"buffer_load_dwordx2 {v(b + q*4, 2)}, v{oC}, s[{S_C}:{S_C+3}], 0 offen offset:{(gi*4+q)*32}")
                k(f"buffer_load_dwordx2 {v(b + q*4 + 2, 2)}, v{oC}, s[{S_D}:{S_D+3}], 0 offen offset:{(gi*4+q)*32}")
            tags[gi] = k.vm_tag()
        gp = gi - (D - 1)
        if gp >= 0:
            k.wait_vm(tags[gp]); b = 128 + (gp % D)*16
            for q in range(4):
                for jd in range(4):
                    k(f"v_perm_b32 v{PKD+jd}, v{b + q*4 + 2 + (jd>>1)}, v{b + q*4 + (jd>>1)}, s{sSELHI if jd & 1 else sSELLO}")
                for jd in range(4):
                    k(f"v_accvgpr_write_b32 a{128 + (gp*4+q)*4 + jd}, v{PKD+jd}")
    lre, lim, ldt, x0, x1, x2, x3 = TT, TT+1, TT+2, PKD, PKD+1, PKD+2, PKD+3
    for r_ in (lre, lim, ldt): k(f"v_lshlrev_b32 v{r_}, 16, v{r_}")
    k(f"v_mul_f32 v{ldt}, {f2u(math.log2(math.e))}, v{ldt}")
    k(f"v_exp_f32 v{ldt}, v{ldt}")
    k("s_nop 0")
    k(f"v_cvt_pk_bf16_f32 v{ldt}, v{ldt}, v{ldt}")
    k(f"v_lshlrev_b32 v{ldt}, 16, v{ldt}")
    k(f"v_mul_f32 v{x0}, v{ldt}, v{lre}")
    k(f"v_mul_f32 v{x1}, v{ldt}, v{lim}")
    k(f"v_mul_f32 v{x0}, {f2u(math.log2(math.e))}, v{x0}")
    k(f"v_exp_f32 v{x0}, v{x0}")
    k(f"v_mul_f32 v{x1}, {f2u(1/(2*math.pi))}, v{x1}")
    k(f"v_rndne_f32 v{x2}, v{x1}")
    k(f"v_sub_f32 v{x1}, v{x1}, v{x2}")
    k(f"v_cos_f32 v{x2}, v{x1}")
    k(f"v_sin_f32 v{x3}, v{x1}")
    k("s_nop 0")
    k(f"v_mul_f32 v{LR}, v{x0}, v{x2}")
    k(f"v_mul_f32 v{LI}, v{x0}, v{x3}")
    k(f"v_mul_f32 v{x0}, v{lre}, v{lre}")
    k(f"v_fma_f32 v{x0}, v{lim}, v{lim}, v{x0}")
    k(f"v_rcp_f32 v{x0}, v{x0}")
    k(f"v_add_f32 v{x1}, -1.0, v{LR}")
    k(f"v_mul_f32 v{x2}, v{x1}, v{lre}")
    k(f"v_fma_f32 v{x2}, v{LI}, v{lim}, v{x2}")
    k(f"v_mul_f32 v{x3}, v{LI}, v{lre}")
    k(f"v_fma_f32 v{x3}, -v{x1}, v{lim}, v{x3}")
    k(f"v_mul_f32 v{CR}, v{x2}, v{x0}")
    k(f"v_mul_f32 v{CI}, v{x3}, v{x0}")
    k(f"v_mov_b32 v{L8R}, v{LR}")
    k(f"v_mov_b32 v{L8I}, v{LI}")
    for _ in range(3):
        k(f"v_mul_f32 v{x0}, v{L8I}, v{L8I}")
        k(f"v_mul_f32 v{x1}, v{L8R}, v{L8I}")
        k(f"v_fma_f32 v{L8R}, v{L8R}, v{L8R}, -v{x0}")
        k(f"v_add_f32 v{L8I}, v{x1}, v{x1}")
    k(f"v_mov_b32 v{HR}, 0")
    k(f"v_mov_b32 v{HI}, 0")
    k(f"v_lshlrev_b32 v{DS4}, 16, v{XD}")
    k(f"v_and_b32 v{DS4+1}, 0xffff0000, v{XD}")
    k(f"v_lshlrev_b32 v{DS4+2}, 16, v{XD+1}")
    k(f"v_and_b32 v{DS4+3}, 0xffff0000, v{XD+1}")
    srd(k, S_A, P_AX, 2048*1024)
    srd(k, S_C, P_OUT, 2048*4096)
    k(f"v_lshrrev_b32 v{t1}, 4, v{LN}")
    k(f"v_and_b32 v{t2}, 7, v{LN}")
    k(f"v_xor_b32 v{t1}, v{t1}, v{t2}")
    k(f"v_lshlrev_b32 v{t1}, 4, v{t1}")
    k(f"v_lshrrev_b32 v{t2}, 3, v{LN}")
    k(f"v_lshl_add_u32 v{aD2}, v{t2}, 11, v{t1}")
    k(f"v_and_b32 v{t2}, 3, v{t2}")
    k(f"v_lshl_add_u32 v{t1}, v{t2}, 10, v{t1}")
    k(f"v_lshrrev_b32 v{t2}, 5, v{LN}")
    k(f"v_lshl_add_u32 v{t1}, v{t2}, 13, v{t1}")
    k(f"s_lshl_b32 s32, s{sW}, 15")
    k(f"v_add_u32 v{aD0}, s32, v{t1}")
    k(f"v_xor_b32 v{aD1}, 64, v{aD0}")
    xfrag_addr(k, aX0, aX1, C_, G_, t1, t2)
    k(f"v_add_u32 v{aX0}, s32, v{aX0}")
    k(f"v_add_u32 v{aX1}, s32, v{aX1}")
    k(f"s_lshl_b32 s33, s{sW}, 2")
    k(f"v_add_u32 v{vOWN}, s33, v{G_}")
    k(f"v_mul_u32_u24 v{t1}, 144, v{C_}")
    k(f"v_add_u32 v{aER}, {hex(L_E)}, v{t1}")
    k(f"v_lshl_add_u32 v{aEW}, v{vOWN}, 3, v{aER}")
    k(f"s_lshl_b32 s33, s{sW}, 11")
    k(f"s_add_u32 s33, s33, {hex(L_H)}")
    k(f"v_lshlrev_b32 v{t1}, 9, v{G_}")
    k(f"v_lshl_add_u32 v{t1}, v{C_}, 2, v{t1}")
    k(f"v_add_u32 v{aHW}, s33, v{t1}")
    k(f"v_lshl_add_u32 v{aHR}, v{LN}, 4, s33")
    k(f"v_lshrrev_b32 v{t1}, 2, v{LN}")
    k(f"v_lshlrev_b32 v{t1}, 11, v{t1}")
    k(f"v_and_b32 v{t2}, 3, v{LN}")
    k(f"v_lshl_add_u32 v{gH}, v{t2}, 4, v{t1}")
    k(f"s_lshl_b32 s32, s{sW}, 16")
    k(f"s_lshl_b32 s33, s{sJ}, 6")
    k("s_add_u32 s32, s32, s33")
    k(f"s_add_u32 s{sHo}, s32, {hex(HBUF)}")
    k(f"v_lshlrev_b32 v{t1}, 12, v{C_}")
    k(f"v_lshl_add_u32 v{gY}, v{G_}, 4, v{t1}")
    k(f"v_lshlrev_b32 v{t1}, 10, v{C_}")
    k(f"v_lshl_add_u32 v{gXD}, v{G_}, 3, v{t1}")
    wait_arrivals(k, TT, 0x80, sFAST, fail)
    if opt.get("diag"):
        import gen; gen.wg_stamp(k, 3, TT)
    if opt.get("force_slow"): k(f"s_mov_b32 s{sFAST}, 0")
    k(f"s_lshl_b32 s{sM0}, s{sW}, 15")
    k(f"s_mov_b32 s{sXo}, 0")
    def dpiece(q_, i, nxt):
        kp, o = i >> 2, i & 3
        k(f"s_add_u32 m0, s{sM0}, {q_*8192 + kp*4096 + o*1024}")
        k(f"s_add_u32 s{sT0}, s{sXo}, {nxt*131072 + (16*(o & 1) + 4*(o >> 1))*1024 + q_*256 + kp*128}")
        k(f"buffer_load_dwordx4 v{aD1 if o & 1 else aD0}, s[{S_A}:{S_A+3}], s{sT0} offen {opt.get('a_fl', '')} lds")
    for q_ in range(3):
        for i in range(8): dpiece(q_, i, 0)
    k(f"v_mov_b32 v{PKD}, 0")
    for _ in range(3): k(f"buffer_store_dword v{PKD}, off, {ws}, s{sFA} sc1")
    k(f"s_mov_b32 s{sB}, 0")
    top = k.label("L_a1")
    k(".p2align 6")
    k(f"{top}:")
    def rd(i):
        kap, rt = i >> 1, i & 1
        k(f"ds_read_b128 {v(XF + (i % 8)*4, 4)}, v{aX1 if kap & 1 else aX0} offset:{(kap >> 1)*4096 + rt*2048}")
        return k.ds_tag()
    for q_ in range(4):
        k(f"s_waitcnt vmcnt({[19, 19, 19, 16][q_]})" )
        tg = {}
        for i in range(8): tg[i] = rd(q_*8 + i)
        for kk in range(4):
            kap = q_*4 + kk
            k.wait_ds(tg[2*kk + 1])
            for rt in range(2):
                for T in range(2):
                    acc = v(ACC + (rt*2 + T)*4, 4)
                    k(f"{MF} {acc}, {v(XF + ((2*kap + rt) % 8)*4, 4)}, {a((kap*2+T)*4, 4)}, {'0' if kap == 0 else acc}")
            if not opt.get("a_nodma"):
                for i in (2*kk, 2*kk + 1): dpiece((q_ + 3) % 4, i, 0 if q_ == 0 else 1)
    k(f"s_add_u32 s{sXo}, s{sXo}, 131072")
    k.nop(2)
    U = lambda tau, T: ACC + ((tau >> 2)*2 + T)*4 + (tau & 3)
    def step(zr_in, zi_in, ur, ui, zr_out, zi_out, lr, li):
        k(f"v_fma_f32 v{TT}, v{lr}, v{zr_in}, v{ur}")
        k(f"v_fma_f32 v{TT+1}, v{lr}, v{zi_in}, v{ui}")
        k(f"v_fma_f32 v{TT+2}, -v{li}, v{zi_in}, v{TT}") if zr_out == zr_in else k(f"v_fma_f32 v{zr_out}, -v{li}, v{zi_in}, v{TT}")
        k(f"v_fma_f32 v{zi_out}, v{li}, v{zr_in}, v{TT+1}")
        if zr_out == zr_in: k(f"v_mov_b32 v{zr_out}, v{TT+2}")
    cur = (U(0, 0), U(0, 1))
    for tau in range(1, 8):
        nxt = (ZR, ZI) if tau & 1 else (GR, GI)
        step(cur[0], cur[1], U(tau, 0), U(tau, 1), nxt[0], nxt[1], LR, LI); cur = nxt
    k(f"ds_write_b64 v{aEW}, {v(ZR,2)}")
    k("s_waitcnt lgkmcnt(0) vmcnt(24)")
    k("s_barrier")
    for i in range(8): k(f"ds_read_b128 {v(EB + 4*i, 4)}, v{aER} offset:{i*16}")
    k(f"v_mov_b32 v{PKD}, s{sB}")
    k(f"v_mov_b32 v{ZR}, v{HR}")
    k(f"v_mov_b32 v{ZI}, v{HI}")
    k("s_waitcnt lgkmcnt(0)")
    k("s_barrier")
    cur = (HR, HI)
    for n in range(16):
        if n:
            k(f"v_cmp_eq_u32 vcc, {n}, v{vOWN}")
        nxt = (GR, GI) if cur == (HR, HI) else (HR, HI)
        if n:
            k(f"v_fma_f32 v{TT}, v{L8R}, v{cur[0]}, v{EB+2*n}")
            k(f"v_fma_f32 v{TT+1}, v{L8R}, v{cur[1]}, v{EB+2*n+1}")
            k(f"v_cndmask_b32 v{ZR}, v{ZR}, v{cur[0]}, vcc")
            k(f"v_cndmask_b32 v{ZI}, v{ZI}, v{cur[1]}, vcc")
            k(f"v_fma_f32 v{nxt[0]}, -v{L8I}, v{cur[1]}, v{TT}")
            k(f"v_fma_f32 v{nxt[1]}, v{L8I}, v{cur[0]}, v{TT+1}")
        else:
            step(cur[0], cur[1], EB, EB+1, nxt[0], nxt[1], L8R, L8I)
        cur = nxt
    assert cur == (HR, HI)
    cur = (ZR, ZI)
    for tau in range(8):
        step(cur[0], cur[1], U(tau, 0), U(tau, 1), U(tau, 0), U(tau, 1), LR, LI); cur = (U(tau, 0), U(tau, 1))
    for tau in range(8):
        zr, zi = U(tau, 0), U(tau, 1)
        k(f"v_mul_f32 v{TT}, v{CR}, v{zr}")
        k(f"v_mul_f32 v{TT+1}, v{CR}, v{zi}")
        k(f"v_fma_f32 v{TT}, -v{CI}, v{zi}, v{TT}")
        k(f"v_fma_f32 v{TT+1}, v{CI}, v{zr}, v{TT+1}")
        k(f"v_cvt_pk_bf16_f32 v{EB+tau}, v{TT}, -v{TT+1}")
        k(f"ds_write_b32 v{aHW}, v{EB+tau} offset:{tau*64}")
    k("s_waitcnt lgkmcnt(0)")
    k(f"ds_read_b128 {v(EB+8,4)}, v{aHR}")
    k(f"ds_read_b128 {v(EB+12,4)}, v{aHR} offset:1024")
    k(f"buffer_store_dword v{PKD}, off, {ws}, s{sFA} sc1")
    k(f"s_add_u32 s32, s{sHo}, 32768")
    sl = k.label("L_hs"); jn = k.label("L_hj")
    k("s_waitcnt lgkmcnt(0)")
    k(f"s_cmp_eq_u32 s{sFAST}, 0")
    k(f"s_cbranch_scc1 {sl}")
    k(f"buffer_store_dwordx4 {v(EB+8,4)}, v{gH}, {ws}, s{sHo} offen")
    k(f"buffer_store_dwordx4 {v(EB+12,4)}, v{gH}, {ws}, s32 offen")
    k(f"s_branch {jn}")
    k(f"{sl}:")
    k(f"buffer_store_dwordx4 {v(EB+8,4)}, v{gH}, {ws}, s{sHo} offen sc1")
    k(f"buffer_store_dwordx4 {v(EB+12,4)}, v{gH}, {ws}, s32 offen sc1")
    k(f"{jn}:")
    k(f"s_add_u32 s{sHo}, s{sHo}, {128*2048}")
    k(f"s_add_u32 s{sB}, s{sB}, 1")
    k(f"s_cmp_lt_u32 s{sB}, 16")
    k(f"s_cbranch_scc1 {top}")
    k("s_waitcnt vmcnt(0)")
    k("s_barrier")
    k(f"v_mov_b32 v{PKD}, 16")
    k(f"buffer_store_dword v{PKD}, off, {ws}, s{sFA} sc1")
    if opt.get("diag"):
        import gen; gen.wg_stamp(k, 1, TT)
    k(f"s_lshl_b32 s32, s{sW}, 15")
    k(f"v_subrev_u32 v{aX0}, s32, v{aX0}")
    k(f"v_subrev_u32 v{aX1}, s32, v{aX1}")
    k(f"s_and_b32 s32, s{sW}, 1")
    k("s_lshl_b32 s33, s32, 6")
    k(f"v_xor_b32 v{aD2}, s33, v{aD2}")
    k("s_lshl_b32 s33, s32, 14")
    k(f"s_lshr_b32 s34, s{sW}, 1")
    k("s_lshl_b32 s35, s34, 10")
    k("s_add_u32 s33, s33, s35")
    k(f"s_and_b32 s35, s{sJ}, 3")
    k("s_lshl_b32 s36, s35, 20")
    k("s_add_u32 s33, s33, s36")
    k(f"s_add_u32 s{sXo}, s33, {hex(HBUF)}")
    k("s_lshl_b32 s33, s34, 14")
    k("s_lshl_b32 s32, s32, 10")
    k(f"s_add_u32 s{sM0}, s33, s32")
    k(f"s_lshl_b32 s{sYo}, s35, 21")
    k(f"s_lshl_b32 s32, s{sWB}, 1")
    k(f"s_add_u32 s{sYo}, s{sYo}, s32")
    k(f"s_lshl_b32 s{sXD}, s35, 19")
    k(f"s_add_u32 s{sXD}, s{sXD}, s{sWB}")
    k(f"s_lshl_b32 s{sQ}, s35, 5")
    k(f"s_mov_b32 s{sAC}, 0")
    k(f"v_mbcnt_lo_u32_b32 v{aD0}, -1, 0")
    k(f"v_mbcnt_hi_u32_b32 v{aD0}, -1, v{aD0}")
    k(f"v_and_b32 v{aD0}, 31, v{aD0}")
    k(f"v_lshlrev_b32 v{aD0}, 2, v{aD0}")
    k(f"v_add_u32 v{aD0}, {hex(F_A)}, v{aD0}")
    def need_wait():
        ok = k.label("L_aok"); loop = k.label("L_ap")
        k(f"s_lshr_b32 s32, s{sQ}, 3")
        k("s_min_u32 s32, s32, 15")
        k(f"s_cmp_gt_u32 s{sAC}, s32")
        k(f"s_cbranch_scc1 {ok}")
        k(f"s_mov_b32 s{sSPIN}, {SPIN_LIMIT}")
        k(f"{loop}:")
        k(f"buffer_load_dword v{TT}, v{aD0}, {ws}, 0 offen sc1")
        k(f"s_sub_u32 s{sSPIN}, s{sSPIN}, 1")
        k(f"s_cbranch_scc1 {fail}")
        k("s_waitcnt vmcnt(0)")
        k(f"v_cmp_ge_u32 vcc, s32, v{TT}")
        k(f"s_cbranch_vccz L_got{ok}")
        k("s_sleep 2")
        k(f"s_branch {loop}")
        k(f"L_got{ok}:")
        k(f"s_add_u32 s{sAC}, s32, 1")
        k(f"{ok}:")
    def dma2():
        need_wait()
        for i in range(8):
            k(f"s_add_u32 m0, s{sM0}, {i*2048}")
            k(f"s_add_u32 s{sT0}, s{sXo}, {i*128}")
            k(f"buffer_load_dwordx4 v{aD2}, {ws}, s{sT0} offen sc1 lds")
        k(f"s_add_u32 s{sXo}, s{sXo}, 32768")
        k(f"s_add_u32 s{sM0}, s{sM0}, 32768")
        k(f"s_and_b32 s{sM0}, s{sM0}, 0x1ffff")
        k(f"s_add_u32 s{sQ}, s{sQ}, 1")
    for i in range(3): dma2()
    k(f"s_mov_b32 s{sB}, 0")
    top2 = k.label("L_a2"); ent = k.label("L_a2e")
    k("s_waitcnt vmcnt(16)")
    k(f"s_branch {ent}")
    k(".p2align 6")
    k(f"{top2}:")
    k("s_waitcnt vmcnt(18)")
    k(f"{ent}:")
    k("s_barrier")
    k(f"buffer_load_dwordx2 {v(XD,2)}, v{gXD}, s[{S_A}:{S_A+3}], s{sXD} offen")
    def rd2(i):
        k(f"ds_read_b128 {v(XF + (i % 8)*4, 4)}, v{aX1 if i & 1 else aX0} offset:{(i >> 1)*2048}")
        return k.ds_tag()
    tg = {}
    for i in range(7): tg[i] = rd2(i)
    dma2()
    for i in range(32):
        k.wait_ds(tg[i])
        acc = v(ACC + (i & 1)*4, 4)
        k(f"{MF} {acc}, {a(128 + i*4, 4)}, {v(XF + (i % 8)*4, 4)}, {'0' if i < 2 else acc}")
        if i + 7 < 32: tg[i+7] = rd2(i + 7)
    for a_ in (aX0, aX1):
        k(f"v_add_u32 v{a_}, 0x8000, v{a_}")
        k(f"v_and_b32 v{a_}, 0x1ffff, v{a_}")
    k("s_waitcnt vmcnt(8)")
    k(f"v_lshlrev_b32 v{TT}, 16, v{XD}")
    k(f"v_and_b32 v{TT+1}, 0xffff0000, v{XD}")
    k(f"v_lshlrev_b32 v{TT+2}, 16, v{XD+1}")
    k(f"v_and_b32 v{TT+3}, 0xffff0000, v{XD+1}")
    for r in range(4): k(f"v_mul_f32 v{TT+r}, v{TT+r}, v{DS4+r}")
    k(f"v_cvt_pk_bf16_f32 v{TT}, v{TT}, v{TT+1}")
    k(f"v_cvt_pk_bf16_f32 v{TT+2}, v{TT+2}, v{TT+3}")
    k(f"v_and_b32 v{TT+1}, 0xffff0000, v{TT}")
    k(f"v_lshlrev_b32 v{TT}, 16, v{TT}")
    k(f"v_and_b32 v{TT+3}, 0xffff0000, v{TT+2}")
    k(f"v_lshlrev_b32 v{TT+2}, 16, v{TT+2}")
    for r in range(4): k(f"v_add_f32 v{ACC+r}, v{ACC+r}, v{ACC+4+r}")
    for r in range(4): k(f"v_fma_f32 v{PKD+r}, 2.0, v{ACC+r}, v{TT+r}")
    k(f"buffer_store_dwordx4 {v(PKD,4)}, v{gY}, s[{S_C}:{S_C+3}], s{sYo} offen")
    k(f"s_add_u32 s{sYo}, s{sYo}, {16*4096}")
    k(f"s_add_u32 s{sXD}, s{sXD}, {16*1024}")
    k(f"s_add_u32 s{sB}, s{sB}, 1")
    k(f"s_cmp_lt_u32 s{sB}, 32")
    k(f"s_cbranch_scc1 {top2}")
    if opt.get("diag"):
        k("s_waitcnt vmcnt(0)")
        import gen; gen.wg_stamp(k, 2, TT)
    k("s_endpgm")
```

```python
import sys, json
from common import *
import chain
HEADER = open("concat_heads__ssm_conv_s5__memory_aug_recurrent_mem_tr__prompt.s.ref").read().split("; Override launch")[0]

DBGSTAMP = False
def wg_stamp(k, slot, vt=250):
    k("s_memrealtime s[32:33]")
    k("s_waitcnt lgkmcnt(0)")
    if DBGSTAMP:
        k(f"v_mov_b32 v{vt}, s32")
        k(f"s_min_u32 s34, s{sG}, 3")
        k(f"s_cmp_eq_u32 s{sG}, 7")
        k("s_cselect_b32 s34, 2, s34")
        k(f"s_cmp_eq_u32 s{sG}, 2")
        k("s_cselect_b32 s34, 1, s34")
        k("s_lshl_b32 s34, s34, 4")
        k(f"s_add_u32 s34, s34, {slot*4}")
        k("s_mov_b64 s[36:37], exec")
        k("s_mov_b64 exec, 1")
        k(f"buffer_atomic_umax v{vt}, off, s[{S_DBG}:{S_DBG+3}], s34")
        k("s_mov_b64 exec, s[36:37]")
        return
    k("s_lshl_b32 s34, s2, 6")
    k(f"s_add_u32 s34, s34, {hex(DIAG + 0x8000 + slot*4)}")
    k(f"v_mov_b32 v{vt}, s32")
    k(f"v_mov_b32 v{vt+1}, 0")
    k("s_mov_b64 s[36:37], exec")
    k("s_mov_b64 exec, 1")
    k(f"buffer_store_dword v{vt}, v{vt+1}, s[{S_WS}:{S_WS+3}], s34 offen")
    k("s_mov_b64 exec, s[36:37]")

def build(opt):
    global DBGSTAMP
    DBGSTAMP = bool(opt.get('dbgstamp'))
    import gen as _g; _g.DBGSTAMP = DBGSTAMP
    k = Asm()
    k(f"{KNAME}:")
    k("s_cmp_ge_u32 s2, 256")
    k("s_cbranch_scc1 L_exit")
    k("s_load_dwordx16 s[64:79], s[0:1], 0")
    k("s_load_dwordx16 s[80:95], s[0:1], 64")
    k("s_load_dwordx4 s[96:99], s[0:1], 128")
    k("s_load_dwordx2 s[100:101], s[0:1], 144")
    k("v_lshrrev_b32 v1, 6, v0")
    k(f"s_and_b32 s{sG}, s2, 7")
    k(f"s_lshr_b32 s{sJ}, s2, 3")
    k(f"v_readfirstlane_b32 s{sW}, v1")
    k(f"s_getreg_b32 s{sXCC}, hwreg(HW_REG_XCC_ID, 0, 4)")
    k(f"s_and_b32 s{sXCC}, s{sXCC}, 7")
    k("s_waitcnt lgkmcnt(0)")
    srd(k, S_WS, P_WS, WS_BYTES)
    srd(k, S_DBG, P_DBG, 256)
    if opt.get("diag"): wg_stamp(k, 0)
    if opt.get("codepf"):
        k("s_getpc_b64 s[32:33]")
        k("v_and_b32 v2, 63, v0")
        k("v_lshlrev_b32 v2, 7, v2")
        k(f"v_lshl_add_u32 v2, v1, 13, v2")
        for i in range(opt["codepf"]):
            k(f"v_add_u32 v3, {i*32768}, v2")
            k(f"global_load_dword v4, v3, s[32:33]")
    roles = opt.get("roles", ["chain"])
    k(f"s_cmp_eq_u32 s{sG}, 0")
    k("s_cbranch_scc1 L_chain" if "chain" in roles else "s_cbranch_scc1 L_exit")
    if "kv" in roles:
        k(f"s_cmp_le_u32 s{sG}, 2")
        k("s_cbranch_scc1 L_kv")
    if "a" in roles:
        k(f"s_cmp_eq_u32 s{sG}, 7")
        k("s_cbranch_scc1 L_parta")
    if "w2" in roles:
        k(f"s_cmp_ge_u32 s{sG}, 3")
        k(f"s_cselect_b32 s32, 1, 0")
        k(f"s_cmp_le_u32 s{sG}, 6")
        k(f"s_cselect_b32 s32, s32, 0")
        k("s_cmp_eq_u32 s32, 1")
        k("s_cbranch_scc1 L_w2")
    k("L_exit:")
    k("s_endpgm")
    k("L_fail:")
    k("s_mov_b64 exec, 1")
    k("v_mov_b32 v4, 0xdead")
    k("v_mov_b32 v5, 252")
    k(f"buffer_store_dword v4, v5, s[{S_DBG}:{S_DBG+3}], 0 offen")
    k("s_endpgm")
    if "chain" in roles:
        k("L_chain:")
        chain.emit_chain(k, opt, "L_fail")
    if "kv" in roles:
        import kv
        k("L_kv:")
        kv.emit(k, opt, "L_fail")
    if "w2" in roles:
        import w2
        k("L_w2:")
        w2.emit(k, opt, "L_fail")
    if "a" in roles:
        import parta
        k("L_parta:")
        parta.emit(k, opt, "L_fail")
    out = HEADER
    out += "; Generated by a Python script (own work): persistent kernel, one workgroup per CU, roles chosen by workgroup id.\n"
    out += "; @launch grid=(256,1,1) block=(256,1,1) lds=163840\n"
    out += f""".amdgcn_target "amdgcn-amd-amdhsa--gfx950"
.text
.globl {KNAME}
.p2align 8
.type {KNAME},@function
"""
    body = k.text().replace(f"    {KNAME}:", f"{KNAME}:")
    if opt.get("noload"):
        import re
        body = re.sub(r"    buffer_load_dwordx4 v9[234], s\[\d+:\d+\], s33 offen\s+lds\n", "    s_nop 0\n    s_nop 0\n", body)
    out += body
    out += f""".section .rodata,"a"
.p2align 6
.amdhsa_kernel {KNAME}
  .amdhsa_next_free_vgpr 512
  .amdhsa_next_free_sgpr 102
  .amdhsa_accum_offset 256
  .amdhsa_group_segment_fixed_size 0
  .amdhsa_kernarg_size 152
  .amdhsa_user_sgpr_count 2
  .amdhsa_user_sgpr_kernarg_segment_ptr 1
  .amdhsa_system_sgpr_workgroup_id_x 1
.end_amdhsa_kernel
"""
    return out

if __name__ == "__main__":
    opt = json.loads(sys.argv[2]) if len(sys.argv) > 2 else {}
    open(sys.argv[1], "w").write(build(opt))
```

```python
import sys, json
from common import *
import chain
HEADER = open("concat_heads__ssm_conv_s5__memory_aug_recurrent_mem_tr__prompt.s.ref").read().split("; Override launch")[0]

DBGSTAMP = False
def wg_stamp(k, slot, vt=250):
    k("s_memrealtime s[32:33]")
    k("s_waitcnt lgkmcnt(0)")
    if DBGSTAMP:
        k(f"v_mov_b32 v{vt}, s32")
        k(f"s_min_u32 s34, s{sG}, 3")
        k(f"s_cmp_eq_u32 s{sG}, 7")
        k("s_cselect_b32 s34, 2, s34")
        k(f"s_cmp_eq_u32 s{sG}, 2")
        k("s_cselect_b32 s34, 1, s34")
        k("s_lshl_b32 s34, s34, 4")
        k(f"s_add_u32 s34, s34, {slot*4}")
        lab = k.label("L_ds")
        k(f"s_lshl_b32 s35, s{sJ}, 2")
        k(f"s_add_u32 s35, s35, s{sW}")
        k("s_cmp_lg_u32 s35, 68")
        k(f"s_cbranch_scc1 {lab}")
        k(f"buffer_store_dword v{vt}, off, s[{S_DBG}:{S_DBG+3}], s34")
        k(f"{lab}:")
        return
    k("s_lshl_b32 s34, s2, 6")
    k(f"s_add_u32 s34, s34, {hex(DIAG + 0x8000 + slot*4)}")
    k(f"v_mov_b32 v{vt}, s32")
    k(f"v_mov_b32 v{vt+1}, 0")
    k("s_mov_b64 s[36:37], exec")
    k("s_mov_b64 exec, 1")
    k(f"buffer_store_dword v{vt}, v{vt+1}, s[{S_WS}:{S_WS+3}], s34 offen")
    k("s_mov_b64 exec, s[36:37]")

def build(opt):
    global DBGSTAMP
    DBGSTAMP = bool(opt.get('dbgstamp'))
    import gen as _g; _g.DBGSTAMP = DBGSTAMP
    k = Asm()
    k(f"{KNAME}:")
    k("s_cmp_ge_u32 s2, 256")
    k("s_cbranch_scc1 L_exit")
    k("s_load_dwordx16 s[64:79], s[0:1], 0")
    k("s_load_dwordx16 s[80:95], s[0:1], 64")
    k("s_load_dwordx4 s[96:99], s[0:1], 128")
    k("s_load_dwordx2 s[100:101], s[0:1], 144")
    k("v_lshrrev_b32 v1, 6, v0")
    k(f"s_and_b32 s{sG}, s2, 7")
    k(f"s_lshr_b32 s{sJ}, s2, 3")
    k(f"v_readfirstlane_b32 s{sW}, v1")
    k(f"s_getreg_b32 s{sXCC}, hwreg(HW_REG_XCC_ID, 0, 4)")
    k(f"s_and_b32 s{sXCC}, s{sXCC}, 7")
    k("s_waitcnt lgkmcnt(0)")
    srd(k, S_WS, P_WS, WS_BYTES)
    srd(k, S_DBG, P_DBG, 256)
    if opt.get("diag"): wg_stamp(k, 0)
    if opt.get("codepf"):
        k("s_getpc_b64 s[32:33]")
        k("v_and_b32 v2, 63, v0")
        k("v_lshlrev_b32 v2, 7, v2")
        k(f"v_lshl_add_u32 v2, v1, 13, v2")
        for i in range(opt["codepf"]):
            k(f"v_add_u32 v3, {i*32768}, v2")
            k(f"global_load_dword v4, v3, s[32:33]")
    roles = opt.get("roles", ["chain"])
    k(f"s_cmp_eq_u32 s{sG}, 0")
    k("s_cbranch_scc1 L_chain" if "chain" in roles else "s_cbranch_scc1 L_exit")
    if "kv" in roles:
        k(f"s_cmp_le_u32 s{sG}, 2")
        k("s_cbranch_scc1 L_kv")
    if "a" in roles:
        k(f"s_cmp_eq_u32 s{sG}, 7")
        k("s_cbranch_scc1 L_parta")
    if "w2" in roles:
        k(f"s_cmp_ge_u32 s{sG}, 3")
        k(f"s_cselect_b32 s32, 1, 0")
        k(f"s_cmp_le_u32 s{sG}, 6")
        k(f"s_cselect_b32 s32, s32, 0")
        k("s_cmp_eq_u32 s32, 1")
        k("s_cbranch_scc1 L_w2")
    k("L_exit:")
    k("s_endpgm")
    k("L_fail:")
    k("s_mov_b64 exec, 1")
    k("v_mov_b32 v4, 0xdead")
    k("v_mov_b32 v5, 252")
    k(f"buffer_store_dword v4, v5, s[{S_DBG}:{S_DBG+3}], 0 offen")
    k("s_endpgm")
    if "chain" in roles:
        k("L_chain:")
        chain.emit_chain(k, opt, "L_fail")
    if "kv" in roles:
        import kv
        k("L_kv:")
        kv.emit(k, opt, "L_fail")
    if "w2" in roles:
        import w2
        k("L_w2:")
        w2.emit(k, opt, "L_fail")
    if "a" in roles:
        import parta
        k("L_parta:")
        parta.emit(k, opt, "L_fail")
    out = HEADER
    out += "; Generated by a Python script (own work): persistent kernel, one workgroup per CU, roles chosen by workgroup id.\n"
    out += "; @launch grid=(256,1,1) block=(256,1,1) lds=163840\n"
    out += f""".amdgcn_target "amdgcn-amd-amdhsa--gfx950"
.text
.globl {KNAME}
.p2align 8
.type {KNAME},@function
"""
    body = k.text().replace(f"    {KNAME}:", f"{KNAME}:")
    if opt.get("noload"):
        import re
        body = re.sub(r"    buffer_load_dwordx4 v9[234], s\[\d+:\d+\], s33 offen\s+lds\n", "    s_nop 0\n    s_nop 0\n", body)
    out += body
    out += f""".section .rodata,"a"
.p2align 6
.amdhsa_kernel {KNAME}
  .amdhsa_next_free_vgpr 512
  .amdhsa_next_free_sgpr 102
  .amdhsa_accum_offset 256
  .amdhsa_group_segment_fixed_size 0
  .amdhsa_kernarg_size 152
  .amdhsa_user_sgpr_count 2
  .amdhsa_user_sgpr_kernarg_segment_ptr 1
  .amdhsa_system_sgpr_workgroup_id_x 1
.end_amdhsa_kernel
"""
    return out

if __name__ == "__main__":
    opt = json.loads(sys.argv[2]) if len(sys.argv) > 2 else {}
    open(sys.argv[1], "w").write(build(opt))
```

```python
from common import *
import math
L_KX, L_MEM, L_QK, L_OX, L_SEL = 0x20000, 0x24000, 0x26000, 0x27000, 0x27800
PSLOT = 0x40000
X, Y, ZN, VA, SS, VXC, VXN, WV = 4, 36, 52, 84, 92, 104, 112, 128
aW, aMEM0, aL, aKXL, aQXw, aQF0, aQF1, aOXw = 120, 121, 122, 123, 124, 125, 126, 127
gPART, gPUB, vJNK, vIDX = 0, 1, 2, 3
sS, sMEM, sPST, sPRD, sPUB, sKo, sVo, sM0, sSELLO, sSELHI = 38, 39, 40, 44, 45, 46, 47, 48, 49, 50
sQKo, sVMo = 49, 50
sTAG = 3
sEND, sROLE = 42, 43
BITOP = sum((((i>>2&1)^(i&1))|((i>>1&1)^(i&1))) << i for i in range(8))
sC, sMASK, sSPIN, sKC, sVC, sT0, sT1, sFAST, sNEED, sFKV, sFCH = 52, 54, 56, 57, 58, 59, 60, 61, 62, 63, 51
RES_L = [0, 1, 3, 4, 5, 7]
def qk_areg(lam, T): return (RES_L.index(lam) * 4 + T) * 8
def qk_lds(lam, T): return ((0 if lam == 2 else 1) * 4 + T) * 2048
WO_A = [(0, 0), (1, 0), (2, 0), (3, 0), (3, 1), (3, 2), (3, 3), (1, 1)]
WO_L = [(2, 1), (2, 2), (2, 3), (0, 1), (0, 2), (0, 3), (1, 2), (1, 3)]
def wo_areg(pr, i): return 192 + WO_A.index((pr, i)) * 8
def wo_lds(pr, i): return 16384 + WO_L.index((pr, i)) * 2048
def wv_reg(lam, T): return WV + (lam * 2 + T) * 8
SM = "v_smfmac_f32_16x16x64_bf16"
MF = "v_mfma_f32_16x16x32_bf16"

def nstamp(k, opt, name):
    if opt.get("diag") and name in opt.get("smap", {}): stamp(k, dict(opt, stamps=range(10)), opt["smap"][name])
def stamp(k, opt, i, drain=True):
    if not opt.get("diag") or i not in opt.get("stamps", range(7)): return
    lab = k.label("L_st")
    k(f"s_cmp_lg_u32 s{sS}, {opt['diag_step']}")
    k(f"s_cbranch_scc1 {lab}")
    k(f"s_memtime s[{64+2*i}:{65+2*i}]")
    k("s_waitcnt lgkmcnt(0)")
    k(f"{lab}:")

def kv_poll(k, fail):
    loop = k.label("L_kvp")
    k(f"s_min_u32 s{sNEED}, s{sNEED}, 64")
    k(f"s_mov_b32 s{sVC}, 0")
    k(f"{loop}:")
    k(f"buffer_load_dwordx2 {v(SS+10,2)}, off, s[{S_WS}:{S_WS+3}], s{sFKV} sc1")
    k(f"s_add_u32 s{sVC}, s{sVC}, 1")
    k(f"s_cmp_gt_u32 s{sVC}, {SPIN_LIMIT}")
    k(f"s_cbranch_scc1 {fail}")
    k("s_waitcnt vmcnt(0)")
    k(f"v_min_u32 v{SS+10}, v{SS+10}, v{SS+11}")
    k("s_nop 0")
    k(f"v_readfirstlane_b32 s{sKC}, v{SS+10}")
    k("s_nop 3")
    k(f"s_cmp_lt_u32 s{sKC}, s{sNEED}")
    k(f"s_cbranch_scc1 {loop}")

def emit_setup(k, opt, fail):
    k.c("================= chain role: setup =================")
    srd(k, S_C, P_WV, 512*8192)
    srd(k, S_D, P_WO, 32*131072)
    srd(k, S_B, P_MEM0, 8192)
    k(f"s_cmp_lt_u32 s{sW}, 2")
    k(f"s_cselect_b32 s{S_A}, s{P_WQ}, s{P_WK}")
    k(f"s_cselect_b32 s{S_A+1}, s{P_WQ+1}, s{P_WK+1}")
    k(f"s_and_b32 s{S_A+1}, s{S_A+1}, 0xffff")
    k(f"s_mov_b32 s{S_A+2}, {hex(512*8192)}")
    k(f"s_mov_b32 s{S_A+3}, 0x20000")
    k(f"s_mov_b32 s{sSELLO}, 0x05040100")
    k(f"s_mov_b32 s{sSELHI}, 0x07060302")
    cval = 128 ** -0.5 * math.log2(math.e)
    import struct
    cb = struct.unpack("<I", struct.pack("<f", cval))[0]
    k(f"s_mov_b32 s{sC}, {hex(cb)}")
    k(f"s_mov_b32 s{sC+1}, {hex(cb)}")
    k(f"s_mov_b32 s{sMASK}, 0x000f000f")
    k(f"s_mov_b32 s{sMASK+1}, 0x000f000f")
    LN, C_, G_, t0, t1, t2 = 100, 101, 102, 103, 104, 105
    k(f"v_and_b32 v{LN}, 63, v0")
    k(f"v_and_b32 v{C_}, 15, v{LN}")
    k(f"v_lshrrev_b32 v{G_}, 4, v{LN}")
    k(f"v_lshlrev_b32 v{t0}, 4, v{LN}")
    k(f"s_lshl_b32 s32, s{sW}, 15")
    k(f"v_add_u32 v{aW}, s32, v{t0}")
    k(f"s_lshl_b32 s32, s{sW}, 11")
    k(f"s_add_u32 s32, s32, {hex(L_MEM)}")
    k(f"v_add_u32 v{aMEM0}, s32, v{t0}")
    k(f"v_add_u32 v{aL}, {hex(L_KX)}, v{t0}")
    k(f"v_mov_b32 v{aKXL}, v{aL}")
    k(f"s_lshr_b32 s32, s{sW}, 1")
    k("s_lshl_b32 s32, s32, 11")
    k(f"s_and_b32 s33, s{sW}, 1")
    k("s_lshl_b32 s33, s33, 10")
    k("s_add_u32 s32, s32, s33")
    k(f"s_add_u32 s32, s32, {hex(L_QK)}")
    k(f"v_lshrrev_b32 v{t1}, 1, v{C_}")
    k(f"v_lshlrev_b32 v{t2}, 7, v{t1}")
    k(f"v_add_u32 v{aQXw}, s32, v{t2}")
    k(f"v_lshlrev_b32 v{t2}, 1, v{G_}")
    k(f"v_xor_b32 v{t2}, v{t2}, v{t1}")
    k(f"v_lshlrev_b32 v{t2}, 4, v{t2}")
    k(f"v_add_u32 v{aQXw}, v{aQXw}, v{t2}")
    k(f"v_and_b32 v{t2}, 1, v{C_}")
    k(f"v_lshlrev_b32 v{t2}, 3, v{t2}")
    k(f"v_add_u32 v{aQXw}, v{aQXw}, v{t2}")
    k(f"v_lshrrev_b32 v{t1}, 2, v{C_}")
    k(f"v_lshlrev_b32 v{t1}, 1, v{t1}")
    k(f"v_and_b32 v{t2}, 1, v{C_}")
    k(f"v_add_u32 v{t1}, v{t1}, v{t2}")
    k(f"v_xor_b32 v{t2}, v{t1}, v{G_}")
    k(f"v_lshlrev_b32 v{t2}, 4, v{t2}")
    k(f"v_lshl_add_u32 v{t2}, v{G_}, 7, v{t2}")
    k(f"v_add_u32 v{aQF0}, {hex(L_QK)}, v{t2}")
    k(f"v_xor_b32 v{aQF1}, 576, v{aQF0}")
    k(f"s_lshl_b32 s32, s{sW}, 9")
    k(f"s_add_u32 s32, s32, {hex(L_OX)}")
    k(f"v_lshlrev_b32 v{t2}, 4, v{t1}")
    k(f"v_lshl_add_u32 v{t2}, v{G_}, 7, v{t2}")
    k(f"v_add_u32 v{aOXw}, s32, v{t2}")
    k(f"v_lshrrev_b32 v{t1}, 2, v{C_}")
    k(f"v_lshlrev_b32 v{t2}, 14, v{t1}")
    k(f"v_lshl_add_u32 v{t2}, v{G_}, 11, v{t2}")
    k(f"v_lshl_add_u32 v{t1}, v{t1}, 2, v{G_}")
    k(f"v_lshlrev_b32 v{t1}, 1, v{t1}")
    k(f"v_add_u32 v{t1}, s{sJ}, v{t1}")
    k(f"v_and_b32 v{t1}, 31, v{t1}")
    k(f"v_lshl_add_u32 v{t2}, v{t1}, 6, v{t2}")
    k(f"v_and_b32 v{t1}, 3, v{C_}")
    k(f"v_lshl_add_u32 v{t2}, v{t1}, 4, v{t2}")
    k(f"s_lshl_b32 s32, s{sW}, 16")
    k(f"v_add_u32 v{gPART}, s32, v{t2}")
    k(f"v_and_b32 v{t1}, 3, v{LN}")
    k(f"v_lshlrev_b32 v{t1}, 2, v{t1}")
    k(f"v_lshl_add_u32 v{gPUB}, v{G_}, 4, v{t1}")
    k(f"v_and_b32 v{t1}, 3, v{C_}")
    k(f"v_lshrrev_b32 v{t2}, 2, v{C_}")
    k(f"v_lshl_add_u32 v{t1}, v{t1}, 2, v{t2}")
    k(f"v_and_b32 v{t2}, 1, v{t1}")
    k(f"v_lshlrev_b32 v{t2}, 4, v{t2}")
    k(f"v_mov_b32 v106, 0x3f80")
    k(f"v_lshlrev_b32 v{t2}, v{t2}, v106")
    k(f"v_lshrrev_b32 v{t1}, 1, v{t1}")
    for i in range(4):
        k(f"v_cmp_eq_u32 vcc, {i}, v{t1}")
        k("s_nop 1")
        k(f"v_cndmask_b32 v{80+i}, 0, v{t2}, vcc")
    k(f"v_and_b32 v{t1}, 2, v{LN}")
    k(f"v_cmp_ne_u32 vcc, 0, v{t1}")
    k(f"v_mov_b32 v{t1}, 0x44444444")
    k(f"v_mov_b32 v{t2}, 0xeeeeeeee")
    k(f"v_cndmask_b32 v{vIDX}, v{t1}, v{t2}, vcc")
    dQK, dWV, dWO, oM0 = 92, 93, 94, 95
    rQK, rWV, rWO, rWP = 86, 88, 90, 84
    k(f"s_lshl_b32 s32, s{sJ}, 8")
    k(f"v_lshrrev_b32 v{t1}, 3, v{LN}")
    k(f"v_and_b32 v{t2}, 7, v{LN}")
    k(f"v_lshlrev_b32 v{t2}, 4, v{t2}")
    k(f"v_lshl_add_u32 v{t1}, v{t1}, 13, v{t2}")
    k(f"s_and_b32 s33, s{sW}, 1")
    k("s_lshl_b32 s33, s33, 7")
    k("s_add_u32 s33, s33, s32")
    k(f"v_add_u32 v{dQK}, s33, v{t1}")
    k(f"s_lshr_b32 s33, s{sW}, 1")
    k("s_lshl_b32 s33, s33, 7")
    k("s_add_u32 s33, s33, s32")
    k(f"v_add_u32 v{dWV}, s33, v{t1}")
    k(f"v_lshlrev_b32 v{t1}, 10, v{G_}")
    k(f"v_lshl_add_u32 v{t1}, v{C_}, 4, v{t1}")
    k(f"s_lshl_b32 s32, s{sJ}, 17")
    k(f"s_lshl_b32 s33, s{sW}, 8")
    k("s_add_u32 s33, s33, s32")
    k(f"v_add_u32 v{dWO}, s33, v{t1}")
    sLB0, sLB1 = sKo, sVo
    k(f"s_lshl_b32 s{sLB0}, s{sW}, 15")
    k(f"s_lshl_b32 s{sLB1}, s{sW}, 13")
    k(f"s_add_u32 s{sLB1}, s{sLB1}, 0x20000")
    k(f"v_and_b32 v{t1}, 1, v{G_}")
    k(f"v_lshrrev_b32 v{t2}, 1, v{G_}")
    k(f"v_lshlrev_b32 v106, 4, v{t1}")
    k(f"v_lshl_add_u32 v106, v{t2}, 1, v106")
    k(f"v_lshlrev_b32 v107, 3, v{C_}")
    k(f"v_lshl_add_u32 v107, v106, 7, v107")
    k(f"v_add_u32 v{rQK}, s{sLB0}, v107")
    k(f"v_add_u32 v{rQK+1}, s{sLB1}, v107")
    k(f"v_lshlrev_b32 v107, 2, v{C_}")
    k(f"v_lshl_add_u32 v107, v106, 7, v107")
    k(f"s_and_b32 s33, s{sW}, 1")
    k("s_lshl_b32 s33, s33, 6")
    k(f"v_add_u32 v107, s33, v107")
    k(f"v_add_u32 v{rWV}, s{sLB0}, v107")
    k(f"v_add_u32 v{rWV+1}, s{sLB1}, v107")
    k(f"v_xor_b32 v{rWP}, 0x8000, v{rWV}")
    k(f"v_xor_b32 v{rWP+1}, 0x2000, v{rWV+1}")
    k(f"v_lshlrev_b32 v106, 2, v{t1}")
    k(f"v_lshl_add_u32 v106, v{t2}, 3, v106")
    k(f"v_lshlrev_b32 v107, 4, v{C_}")
    k(f"v_lshl_add_u32 v107, v106, 8, v107")
    k(f"v_add_u32 v{rWO}, s{sLB0}, v107")
    k(f"v_add_u32 v{rWO+1}, s{sLB1}, v107")
    k(f"v_and_b32 v{t1}, 1, v{G_}")
    k(f"v_lshlrev_b32 v{t1}, 10, v{t1}")
    k(f"v_lshl_add_u32 v{t1}, v{t2}, 1, v{t1}")
    k(f"v_and_b32 v{t2}, 3, v{LN}")
    k(f"v_lshl_add_u32 v{t1}, v{t2}, 4, v{t1}")
    k(f"s_lshl_b32 s32, s{sW}, 11")
    k(f"s_lshr_b32 s33, s{sJ}, 1")
    k("s_lshl_b32 s33, s33, 6")
    k("s_add_u32 s32, s32, s33")
    k(f"s_and_b32 s33, s{sJ}, 1")
    k("s_lshl_b32 s33, s33, 2")
    k("s_add_u32 s32, s32, s33")
    k(f"v_add_u32 v{oM0}, s32, v{t1}")
    if opt.get("diag"):
        import gen; gen.wg_stamp(k, 3, 110)
    for i in range(4): k(f"v_mov_b32 v{72+i}, -1")
    k(f"v_mov_b32 v76, 0")
    k(f"v_lshlrev_b32 v77, 2, v{LN}")
    k(f"s_lshl_b32 s32, s{sJ}, 14")
    k(f"s_lshl_b32 s33, s{sW}, 12")
    k("s_add_u32 s32, s32, s33")
    k(f"s_add_u32 s33, s32, {hex(MEMB - L_KX)}")
    k(f"s_add_u32 s34, s32, {hex(PART - L_KX)}")
    k(f"s_lshl_b32 s{sEND}, s{sROLE}, 16")
    k(f"s_mov_b32 s{sPST}, s33")
    k(f"s_add_u32 s{sPST+1}, s34, s{sEND}")
    k("s_lshr_b32 s32, s32, 1")
    k(f"s_add_u32 s{sPRD}, s32, {hex(PART - L_KX)}")
    k(f"s_add_u32 s{sPRD}, s{sPRD}, s{sEND}")
    k(f"s_lshl_b32 s{sFCH}, s{sJ}, 8")
    k(f"s_add_u32 s{sFKV}, s{sFCH}, {hex(F_KV)}")
    k(f"s_add_u32 s{sFCH}, s{sFCH}, {hex(F_CH)}")
    def prefill():
        lab = k.label("L_nofill")
        k(f"s_cmp_lg_u32 s{sROLE}, 0")
        k(f"s_cbranch_scc1 {lab}")
        for i in range(4):
            k(f"buffer_store_dwordx4 v[72:75], v{aL}, s[{S_WS}:{S_WS+3}], s{sPST} offen offset:{i*1024} sc1")
        k(f"buffer_store_dword v76, v77, s[{S_WS}:{S_WS+3}], s{sFCH} offen sc1")
        k(f"{lab}:")
        for i in range(4):
            k(f"buffer_store_dwordx4 v[72:75], v{aL}, s[{S_WS}:{S_WS+3}], s{sPST+1} offen offset:{i*1024} sc1")
        k(f"s_lshl_b32 s32, s{sW}, 2")
        k(f"s_add_u32 s{sFCH}, s{sFCH}, s32")
        return k.vm_tag()
    nt = opt.get("wflags", "")
    TMP, STG, PARK = 96, 104, 4
    k(f"s_lshl_b32 s{sT0}, s{sW}, 20")
    k(f"s_lshl_b32 s{sT1}, s{sW}, 15")
    def slot_m0(sl, i): return f"s_add_u32 m0, s{sLB0 if sl < 8 else sLB1}, {(sl % 8)*4096 + i*1024}"
    def sel(hi): return sSELHI if hi else sSELLO
    def rho(j4, p): return 8*(j4 >> 1) + (j4 & 1) + 4*(1 - p)
    parked = []
    def g_qk(lam, jq):
        def issue(sl):
            k(f"s_xor_b32 s32, s{sT0}, {hex(lam << 19)}")
            for i in range(4):
                k(slot_m0(sl, i)); k(f"s_add_u32 s33, s32, {(32*jq + 8*i) * 8192}")
                k(f"buffer_load_dwordx4 v{dQK}, s[{S_A}:{S_A+3}], s33 offen {nt} lds")
        def proc(sl):
            for j4 in range(4):
                for p in range(2):
                    k(f"ds_read_b64 {v(LDQ(j4, p), 2)}, v{rQK + (sl >= 8)} offset:{(sl % 8)*4096 + rho(j4, p)*128}")
            for j4 in range(4):
                k(f"s_waitcnt lgkmcnt({6 - 2*j4})")
                for T in range(4):
                    dst = TMP + T if lam in RES_L else PARK + len(parked)*16 + T*4 + j4
                    k(f"v_perm_b32 v{dst}, v{LDQ(j4, 1) + (T>>1)}, v{LDQ(j4, 0) + (T>>1)}, s{sel(T & 1)}")
                if lam in RES_L:
                    for T in range(4): k(f"v_accvgpr_write_b32 a{qk_areg(lam,T)+jq*4+j4}, v{TMP+T}")
            if lam not in RES_L: parked.append((lam, jq))
        return (issue, proc)
    def LDQ(j4, p): return STG + j4*4 + p*2
    def g_wv(lam, jq):
        def issue(sl):
            k(f"s_xor_b32 s32, s{sT0}, {hex(lam << 19)}")
            for i in range(4):
                k(slot_m0(sl, i)); k(f"s_add_u32 s33, s32, {(32*jq + 8*i) * 8192}")
                k(f"buffer_load_dwordx4 v{dWV}, s[{S_C}:{S_C+3}], s33 offen {nt} lds")
        def proc(sl):
            k("s_barrier")
            for o_, base in enumerate((rWV, rWP)):
                for j4 in range(4):
                    for p in range(2):
                        k(f"ds_read_b32 v{STG + o_*8 + j4*2 + p}, v{base + (sl >= 8)} offset:{(sl % 8)*4096 + rho(j4, p)*128}")
            for o_ in range(2):
                k(f"s_waitcnt lgkmcnt({8 - 8*o_})")
                for j4 in range(4):
                    for T in range(2):
                        k(f"v_perm_b32 v{wv_reg(lam ^ (2*o_), T) + jq*4 + j4}, v{STG + o_*8 + j4*2 + 1}, v{STG + o_*8 + j4*2}, s{sel(T)}")
        return (issue, proc, True)
    def g_wo(i_, jq):
        def issue(sl):
            k(f"s_xor_b32 s32, s{sT1}, {hex(i_ << 15)}")
            for i in range(4):
                k(slot_m0(sl, i)); k(f"s_add_u32 s33, s32, {(16*jq + 4*i) * 1024}")
                k(f"buffer_load_dwordx4 v{dWO}, s[{S_D}:{S_D+3}], s33 offen {nt} lds")
        def proc(sl):
            for u in range(2):
                for p in range(2):
                    k(f"ds_read_b128 {v(STG + u*8 + p*4, 4)}, v{rWO + (sl >= 8)} offset:{(sl % 8)*4096 + (2*u + p)*256}")
            k("s_waitcnt lgkmcnt(0)")
            for pr in range(4):
                b = TMP + (pr & 1)*4
                for u in range(2):
                    for hf in range(2):
                        k(f"v_perm_b32 v{b + u*2 + hf}, v{STG + u*8 + 4 + pr}, v{STG + u*8 + pr}, s{sel(hf)}")
                if (pr, i_) in WO_A:
                    for j in range(4): k(f"v_accvgpr_write_b32 a{wo_areg(pr,i_) + jq*4 + j}, v{b + j}")
                else:
                    k(f"ds_write_b128 v{aW}, {v(b, 4)} offset:{wo_lds(pr,i_) + jq*1024}")
            k("s_waitcnt lgkmcnt(0)")
        return (issue, proc)
    pieces = []
    qres = [g_qk(l, q) for l in RES_L for q in range(2)]
    wvp = [g_wv(l, q) for l in (0, 1, 4, 5) for q in range(2)]
    for i in range(12):
        if i < 8: pieces.append(wvp[i])
        pieces.append(qres[i])
    pieces += [g_wo(i, q) for i in range(4) for q in range(2)]
    pieces += [g_qk(l, q) for l in (2, 6) for q in range(2)]
    free = list(range(opt.get("nslots", 10))); infl = []; held = []; pi = 0; arrived = False; fill_tag = None
    FILL_AT, ARR_AT = opt.get("fill_at", 0), opt.get("arr_at", 0)
    while pi < len(pieces) or infl:
        if fill_tag is None and pi == FILL_AT: fill_tag = prefill()
        ok = [s_ for s_ in free if pi < 20 or s_ not in (4, 5, 6, 7)] if pi < len(pieces) else []
        if ok:
            sl = ok[0]; free.remove(sl); pieces[pi][0](sl); infl.append((pi, sl, k.vm_tag(), not arrived)); pi += 1
            continue
        if not arrived and not opt.get("nocodepf"):
            k("s_getpc_b64 s[34:35]")
            k("L_pc_here:")
            k("s_add_u32 s34, s34, L_chain_loops - L_pc_here")
            k("s_addc_u32 s35, s35, 0")
            k(f"s_lshl_b32 s32, s{sW}, 12")
            k(f"v_lshl_add_u32 v78, v77, 4, s32")
            k("global_load_dword v79, v78, s[34:35]")
        if not arrived and fill_tag is not None and infl[0][0] >= ARR_AT:
            k.wait_vm(fill_tag); arrive(k, 100, sROLE); arrived = True
        p_, sl, tag, pre = infl.pop(0)
        k(f"s_waitcnt vmcnt({max(k.vm_seq - tag - (1 if (pre and arrived) else 0), 0)})")
        pieces[p_][1](sl)
        if len(pieces[p_]) > 2:
            free += held; held = [sl]
        else:
            free.append(sl)
            if p_ == 17: k("s_barrier"); free += held; held = []
        if opt.get("diag2") and p_ in (0, 10, 20, 27):
            k(f"s_memrealtime s[{64 + 2*[0, 10, 20, 27].index(p_)}:{65 + 2*[0, 10, 20, 27].index(p_)}]"); k("s_waitcnt lgkmcnt(0)")
    assert arrived
    for n_, (lam, jq) in enumerate(parked):
        for T in range(4): k(f"ds_write_b128 v{aW}, {v(PARK + n_*16 + T*4, 4)} offset:{qk_lds(lam,T) + jq*1024}")
    k("s_barrier")
    k(f"ds_write_b128 v{aL}, v[80:83] offset:{L_SEL - L_KX}")
    k("s_waitcnt lgkmcnt(0)")
    if opt.get("diag"):
        import gen; gen.wg_stamp(k, 1, 4)
    NB = opt.get("nb", 0)
    k(f"s_lshl_b32 s{sNEED}, s{sROLE}, 5")
    k(f"s_or_b32 s{sNEED}, s{sNEED}, {opt.get('chain_wait_mask', 0x07)}")
    wait_arrivals(k, 100, f"s{sNEED}", sFAST, fail, sROLE)
    k(f"s_cmp_eq_u32 s{sROLE}, 0")
    k(f"s_cselect_b32 s{sFAST}, s{sFAST}, 0")
    k(f"s_cselect_b32 s{sS}, {NB}, 0")
    k(f"s_cselect_b32 s{sEND}, 63, {NB}")
    k(f"s_lshl_b32 s32, s{sJ}, 8")
    k(f"s_lshl_b32 s33, s{sW}, 6")
    k("s_add_u32 s32, s32, s33")
    k(f"s_add_u32 s{sPUB}, s32, {hex(MEMB)}")
    lab = k.label("L_nom0")
    k(f"s_cmp_lg_u32 s{sS}, 0")
    k(f"s_cbranch_scc1 {lab}")
    k(f"buffer_load_ushort v{100}, v{oM0}, s[{S_B}:{S_B+3}], 0 offen offset:8")
    k(f"buffer_load_ushort v{101}, v{oM0}, s[{S_B}:{S_B+3}], 0 offen")
    k("s_waitcnt vmcnt(0)")
    k(f"v_lshl_or_b32 v100, v101, 16, v100")
    k(f"v_min_u32 v100, -2, v100")
    k(f"s_mov_b64 exec, s[{sMASK}:{sMASK+1}]")
    k(f"buffer_store_dword v100, v{gPUB}, s[{S_WS}:{S_WS+3}], s{sPUB} offen sc1")
    k("s_mov_b64 exec, -1")
    k(f"{lab}:")
    for i in range(4):
        k(f"s_cmp_eq_u32 s{sW}, {i}")
        k(f"s_cselect_b64 s[{8+2*i}:{9+2*i}], -1, 0")
    k(f"s_lshl_b32 s34, s{sS}, 13")
    k(f"s_add_u32 s{sPUB}, s{sPUB}, s34")
    k(f"s_add_u32 s{sPUB}, s{sPUB}, 8192")
    k(f"s_mov_b32 s{sTAG}, 0")
    k(f"s_mov_b32 s{sSPIN}, {SPIN_LIMIT}")
    k(f"s_add_u32 s{sMEM}, s34, {hex(MEMB - L_MEM)}")
    k(f"s_lshl_b32 s33, s{sROLE}, 16")
    for i in range(2): k(f"s_add_u32 s{sPST+i}, s33, {hex(PART + i*8192)}")
    k(f"s_lshl_b32 s32, s{sJ}, 19")
    k("s_add_u32 s32, s32, s34")
    k(f"s_add_u32 s{sKo}, s32, {hex(KX - L_MEM)}")
    k(f"s_add_u32 s{sVo}, s32, {hex(VX - L_MEM)}")
    k(f"s_add_u32 s32, s32, {hex(KMVM)}")
    k(f"s_lshl_b32 s33, s{sW}, 10")
    k(f"s_add_u32 s32, s32, s33")
    k(f"s_sub_u32 s{sQKo}, s32, {hex(L_KX)}")
    k(f"s_add_u32 s{sVMo}, s{sQKo}, 4096")
    k(f"s_lshl_b32 s{sM0}, s{sW}, 11")
    k(f"s_add_u32 s{sM0}, s{sM0}, {hex(L_KX)}")
    k(f"s_add_u32 s{sNEED}, s{sS}, 1")
    kv_poll(k, fail)
    ws = f"s[{S_WS}:{S_WS+3}]"
    k(f"s_mov_b32 m0, s{sM0}")
    k(f"buffer_load_dwordx4 {v(VXC,4)}, v{aMEM0}, {ws}, s{sVo} offen sc1")
    k(f"buffer_load_dwordx4 {v(VXC+4,4)}, v{aMEM0}, {ws}, s{sVo} offen offset:1024 sc1")
    k(f"buffer_load_dwordx4 v{aMEM0}, {ws}, s{sKo} offen sc1 lds")
    k(f"buffer_load_dwordx4 v{aMEM0}, {ws}, s{sKo} offen offset:1024 sc1 lds")
    k(f"s_add_u32 s{sKo}, s{sKo}, 8192")
    k(f"s_add_u32 s{sVo}, s{sVo}, 8192")
    k(f"s_xor_b32 s{sM0}, s{sM0}, 0x2000")
    for i in range(16): k(f"v_mov_b32 v{Y+i}, 0")
    for i in range(8): k(f"v_mov_b32 v{VA+i}, 0")
    for p in range(1, 4): k(f"v_xor_b32 v{SS+p}, {p<<11}, v{aMEM0}")
    k(f"v_mov_b32 v{SS+8}, s{sS}")
    k(f"v_xor_b32 v{SS+9}, 16, v{aQXw}")
    k(f"s_add_u32 s{sNEED}, s{sS}, 2")
    for T in range(4):
        for hh in range(2):
            k(f"ds_read_b128 {v(ZN + T*8 + hh*4, 4)}, v{aW} offset:{qk_lds(2,T) + hh*1024}")
    for _ in range(opt.get("pdepth", 1)):
        k(f"buffer_load_dwordx4 {v(X,4)}, v{aMEM0}, {ws}, s{sMEM} offen sc1")
        k(f"buffer_load_dwordx4 {v(X+4,4)}, v{aMEM0}, {ws}, s{sMEM} offen offset:1024 sc1")
    k("s_waitcnt lgkmcnt(0)")
    if opt.get("diag"):
        k("s_mov_b32 s80, 0"); k("s_mov_b32 s82, 0")
        k("s_memrealtime s[90:91]")
        k("s_memtime s[84:85]")
        k("s_waitcnt lgkmcnt(0)")

def emit_loop(k, opt, fail, done, st):
    ws = f"s[{S_WS}:{S_WS+3}]"
    top = k.label("L_step"); retA = k.label("L_retA"); retB = k.label("L_retB"); okB = k.label("L_okB")
    kvs = k.label("L_kvs"); kvb = k.label("L_kvb")
    def qk(lam, T):
        B = a(qk_areg(lam, T), 8) if lam in RES_L else v(ZN + T*8, 8)
        k(f"{SM} {v(Y+4*T,4)}, {v(X+4*lam,4)}, {B}, v{vIDX}")
    def vp(lam, T):
        k(f"{SM} {v(VA+4*T,4)}, {v(X+4*lam,4)}, {v(wv_reg(lam,T),8)}, v{vIDX}")
    def rdw(dst, off): k(f"ds_read_b128 {v(dst,4)}, v{aW} offset:{off}")
    def pollA():
        k(f"buffer_load_dwordx4 {v(X,4)}, v{aMEM0}, {ws}, s{sMEM} offen sc1")
        k(f"buffer_load_dwordx4 {v(X+4,4)}, v{aMEM0}, {ws}, s{sMEM} offen offset:1024 sc1")
    def zero2(r): k(f"v_mov_b64 {v(r,2)}, 0")
    def add(d, x, y): k(f"v_add_f32 v{d}, v{x}, v{y}")
    def cvt(d, x, y): k(f"v_cvt_pk_bf16_f32 v{d}, v{x}, v{y}")
    def only(w_, ins):
        k(f"s_mov_b64 exec, s[{8+2*w_}:{9+2*w_}]"); k(ins); k("s_mov_b64 exec, -1")
    def kpub(w_):
        if not opt.get("novpub"): only(w_, f"buffer_store_dwordx4 {v(Y+4,4)}, v{aL}, {ws}, s{sQKo} offen sc1")
    def vpub(w_):
        if not opt.get("novpub"): only(w_, f"buffer_store_dwordx4 {v(VA+4,4)}, v{aL}, {ws}, s{sVMo} offen sc1")
    PD = opt.get("pdepth", 1)
    def front(lastv, lab_top, lab_ret):
        k(f"s_branch {lab_top}")
        k(".p2align 6")
        k(f"{lab_ret}:")
        k("s_mov_b64 exec, vcc"); pollA(); k("s_mov_b64 exec, -1")
        if opt.get("cnt"): k("s_add_u32 s80, s80, 1")
        k(f"s_sub_u32 s{sSPIN}, s{sSPIN}, 1")
        k(f"s_cbranch_scc1 {fail}")
        k(f"{lab_top}:")
        if not opt.get("nowait"): k("s_waitcnt vmcnt(0)")
        k(f"v_max3_u32 v{SS}, v{X}, v{X+1}, v{X+2}")
        k(f"v_max3_u32 v{SS+10}, v{X+3}, v{X+4}, v{X+5}")
        k(f"v_max3_u32 v{SS}, v{SS}, v{X+6}, v{X+7}")
        k(f"v_max_u32 v{SS}, v{SS}, v{SS+10}")
        k(f"v_cmp_eq_u32 vcc, -1, v{SS}")
        if not opt.get("nocheck"): k(f"s_cbranch_vccnz {lab_ret}")
        k(f"ds_write_b128 v{aMEM0}, {v(X,4)}")
        k(f"ds_write_b128 v{aMEM0}, {v(X+4,4)} offset:1024")
        if not lastv: stamp(k, opt, 0)
        if opt.get("trace"):
            k("s_memtime s[66:67]")
            k(f"s_lshl_b32 s68, s{sS}, 4")
            k(f"s_lshl_b32 s69, s{sW}, 2")
            k("s_add_u32 s68, s68, s69")
            k("s_add_u32 s68, s68, 0x27c00")
            k("s_waitcnt lgkmcnt(0)")
            k(f"v_mov_b32 v{SS+10}, s66")
            k(f"v_mov_b32 v{SS+11}, s68")
            k(f"ds_write_b32 v{SS+11}, v{SS+10}")
        L = not lastv
        KV = L and not opt.get("nokv")
        qk(0, 0)
        if L: k(f"s_cmp_lt_u32 s{sKC}, s{sNEED}")
        qk(0, 1)
        if L:
            k(f"s_cbranch_scc1 {kvs}")
            k(f"{kvb}:")
        qk(0, 2)
        if KV: k(f"buffer_load_dwordx4 {v(VXN,4)}, v{aMEM0}, {ws}, s{sVo} offen sc1")
        qk(0, 3)
        k("s_waitcnt lgkmcnt(0)")
        k("s_barrier")
        if not lastv: stamp(k, opt, 1)
        tg = {}
        seq = [(1, 0), (1, 1), (1, 2), (1, 3)]
        for i, lam in enumerate(range(2, 8)):
            k(f"ds_read_b128 {v(X+4*lam,4)}, v{SS+(lam>>1)} offset:{(lam&1)*1024}")
            tg[lam] = k.ds_tag()
            if i < 4: qk(*seq[i])
        zr = [(T, hh) for T in range(4) for hh in range(2)]
        def zread(i): T, hh = zr[i]; rdw(ZN + T*8 + hh*4, qk_lds(6, T) + hh*1024)
        if L: k(f"s_mov_b32 m0, s{sM0}")
        k.wait_ds(tg[2])
        qk(2, 0)
        if KV: k(f"buffer_load_dwordx4 {v(VXN+4,4)}, v{aMEM0}, {ws}, s{sVo} offen offset:1024 sc1")
        tvx = k.vm_tag()
        qk(2, 1); zread(0)
        qk(2, 2)
        if KV: k(f"buffer_load_dwordx4 v{aMEM0}, {ws}, s{sKo} offen sc1 lds")
        qk(2, 3); k.wait_ds(tg[7])
        qk(3, 0)
        if KV: k(f"buffer_load_dwordx4 v{aMEM0}, {ws}, s{sKo} offen offset:1024 sc1 lds")
        qk(3, 1); zread(1); qk(3, 2); zread(2); qk(3, 3); zread(3)
        qk(4, 0); zread(4); qk(4, 1); zread(5); qk(4, 2); zread(6); qk(4, 3); zread(7); tz = k.ds_tag()
        qk(5, 0)
        if not opt.get("novpub") and not opt.get("noflag"): k(f"buffer_store_dword v{SS+8}, off, {ws}, s{sFCH} sc1")
        qk(5, 1)
        if L and not opt.get("nopf"): k(f"s_add_u32 s{sT0}, s{sPUB}, 8192")
        qk(5, 2)
        if L and not opt.get("nopf"): k(f"buffer_load_dword v{vJNK}, v{gPUB}, {ws}, s{sT0} offen sc1")
        qk(5, 3)
        qk(7, 0)
        if L: k(f"buffer_load_dword v{vJNK}, v{gPUB}, {ws}, s{sFKV} offen sc1")
        qk(7, 1); qk(7, 2)
        qk(7, 3)
        k.wait_ds(tz)
        qk(6, 0); k("s_nop 0")
        qk(6, 1); k("s_nop 0")
        qk(6, 2); k(f"ds_read_b128 {v(ZN,4)}, v{aKXL}" if L else "s_nop 0")
        qk(6, 3); k(f"ds_read_b128 {v(ZN+4,4)}, v{aKXL} offset:1024" if L else "s_nop 0")
        if L: stamp(k, opt, 9)
        vp(0, 0); add(Y, Y, Y+2)
        vp(0, 1); add(Y+1, Y+1, Y+3)
        add(Y+2, Y+4, Y+6); add(Y+3, Y+5, Y+7)
        add(Y+8, Y+8, Y+10); add(Y+9, Y+9, Y+11)
        cvt(Y+4, Y, Y+2); cvt(Y+6, Y+1, Y+3)
        add(Y+10, Y+12, Y+14); add(Y+11, Y+13, Y+15)
        cvt(Y+5, Y+8, Y+10)
        if L: k(f"ds_write_b64 v{aQXw}, {v(Y+4,2)}")
        cvt(Y+7, Y+9, Y+11)
        if L: k(f"ds_write_b64 v{SS+9}, {v(Y+6,2)}")
        vp(1, 0); kpub(2)
        vp(1, 1)
        if lastv: kpub(3)
        return tvx
    tvx = front(False, top, retA)
    k(f"ds_read_b128 {v(ZN+8,4)}, v{aKXL} offset:2048")
    vp(2, 0); k(f"ds_read_b128 {v(ZN+12,4)}, v{aKXL} offset:3072")
    vp(2, 1); kpub(3)
    k("s_waitcnt lgkmcnt(2)")
    k("s_barrier")
    stamp(k, opt, 2)
    rest = [(l, T) for l in range(3, 8) for T in range(2)]
    for e in range(4):
        k(f"ds_read_b128 {v(Y+4*e,4)}, v{aQF1 if e&1 else aQF0} offset:{(e>>1)*1024}")
        vp(*rest[e])
    tqf = k.ds_tag()
    for e in range(4):
        k(f"ds_read_b128 {v(X+4*e,4)}, v{aKXL} offset:{4096 + e*1024}")
        vp(*rest[4+e])
    tkx1 = k.ds_tag()
    vp(*rest[8]); k.wait_ds(tqf); vp(*rest[9])
    S0, S1, SM_ = SS, SS+4, SS+8
    mx, t2, nm, l0, l1 = X+10, X+11, X+12, X+13, X+14
    nstamp(k, opt, "a")
    for e in range(4):
        k(f"{MF} {v(S0,4)}, {v(ZN+4*e,4)}, {v(Y+4*e,4)}, {'0' if e==0 else v(S0,4)}")
        k(f"ds_read_b128 {v(X+16+4*e,4)}, v{aQF1 if e&1 else aQF0} offset:{2048 + (e>>1)*1024}")
        if e == 3: tkf = k.ds_tag(); k.wait_ds(tkx1)
    ZS = {(2, 3): ZN+16, (0, 1): ZN+24, (2, 1): ZN, (2, 2): ZN+8, (0, 2): X, (0, 3): X+8, (1, 2): ZN, (1, 3): ZN+8}
    wq = [(ZS[f_] + 4*h_, wo_lds(*f_) + 1024*h_) for f_ in ((2, 3), (0, 1), (2, 1), (2, 2)) for h_ in range(2)]
    def wnext():
        if wq: rdw(*wq.pop(0))
    for e in range(4):
        k(f"{MF} {v(S1,4)}, {v(X+4*e,4)}, {v(Y+4*e,4)}, {'0' if e==0 else v(S1,4)}")
        add(VA+e, VA+(e&1)+4*(e>>1), VA+2+(e&1)+4*(e>>1))
        if e == 3: k.wait_ds(tkf)
        else: wnext()
    fill = [[f"v_cvt_pk_bf16_f32 v{VA+4}, v{VA}, v{VA+1}"],
            [f"v_cvt_pk_bf16_f32 v{VA+5}, v{VA+2}, v{VA+3}"],
            [f"v_max3_f32 v{mx}, v{S0}, v{S0+1}, v{S0+2}"],
            [f"v_max3_f32 v{t2}, v{S1+1}, v{S1+2}, v{S1+3}"]]
    for e in range(4):
        k(f"{MF} {v(SM_,4)}, {v(X+16+4*e,4)}, {v(Y+4*e,4)}, {'0' if e==0 else v(SM_,4)}")
        for f_ in fill[e]: k(f_)
        wnext()
    P, PM = X, X+4
    nstamp(k, opt, "b")
    k(f"v_max3_f32 v{mx}, v{mx}, v{S0+3}, v{S1}")
    cvt(VA+6, VA+2, VA+3); cvt(VA+7, VA, VA+1)
    VM = opt.get("vmode", 1)
    if VM == 0: vpub(0)
    k(f"v_max_f32 v{mx}, v{mx}, v{t2}")
    k(f"v_mov_b32 v{PM+1}, 0")
    wnext()
    if VM == 0: vpub(1)
    else: k(f"buffer_store_dwordx4 {v(VA+4,4)}, v{aL}, {ws}, s{sVMo} offen sc1"); k("s_nop 0")
    k(f"v_max3_f32 v{t2}, v{mx}, v{SM_}, v{SM_+1}")
    k(f"v_max3_f32 v{mx}, v{mx}, v{SM_}, v{SM_+1}")
    zero2(Y); zero2(Y+2)
    k(f"v_permlane16_swap_b32 v{mx}, v{t2}")
    k(f"v_max_f32 v{nm}, v{mx}, v{t2}")
    k(f"v_max_f32 v{mx}, v{mx}, v{t2}")
    zero2(Y+4); zero2(Y+6)
    k(f"v_permlane32_swap_b32 v{mx}, v{nm}")
    k(f"v_max_f32 v{mx}, v{mx}, v{nm}")
    k(f"v_mul_f32 v{nm}, s{sC}, v{mx}")
    for i in range(5):
        r = SS + 2*i
        k(f"v_pk_fma_f32 {v(r,2)}, {v(r,2)}, s[{sC}:{sC+1}], {v(nm,2)} op_sel_hi:[1,1,0] neg_lo:[0,0,1] neg_hi:[0,0,1]")
    for i in range(10):
        k(f"v_exp_f32 v{SS+i}, v{SS+i}")
        if i in (3, 5, 7, 9): k(f"v_cvt_pk_bf16_f32 v{P+(i-3)//2}, v{SS+i-3}, v{SS+i-2}")
    O = X+16
    nstamp(k, opt, "c")
    k(f"v_pk_add_f32 {v(SS,2)}, {v(SS,2)}, {v(SS+2,2)}")
    k(f"v_cvt_pk_bf16_f32 v{PM}, v{SS+8}, v{SS+9}")
    k(f"{MF} {v(O,4)}, {v(VXC,4)}, {v(P,4)}, 0")
    add(SS+4, SS+4, SS+6); add(SS+5, SS+5, SS+7)
    if VM == 0: vpub(2)
    k(f"{MF} {v(O+4,4)}, {v(VXC+4,4)}, {v(P,4)}, 0")
    add(SS, SS, SS+8); add(SS+1, SS+1, SS+9)
    k(f"v_mfma_f32_16x16x16_bf16 {v(O,4)}, {v(VA+4,2)}, {v(PM,2)}, {v(O,4)}")
    add(SS+4, SS+4, SS+5); add(SS, SS, SS+1)
    if VM == 0: vpub(3)
    k(f"v_mfma_f32_16x16x16_bf16 {v(O+4,4)}, {v(VA+6,2)}, {v(PM,2)}, {v(O+4,4)}")
    add(l0, SS, SS+4); add(l1, SS, SS+4)
    k(f"s_add_u32 s{sS}, s{sS}, 1")
    zero2(Y+8)
    k(f"v_permlane16_swap_b32 v{l0}, v{l1}")
    add(t2, l0, l1); add(l1, l0, l1)
    zero2(Y+10); zero2(Y+12)
    k(f"v_permlane32_swap_b32 v{t2}, v{l1}")
    add(l0, t2, l1)
    k(f"v_rcp_f32 v{nm}, v{l0}")
    zero2(Y+14)
    for i in range(4):
        k(f"v_pk_mul_f32 {v(O+2*i,2)}, {v(O+2*i,2)}, {v(nm,2)} op_sel_hi:[1,0]")
    OP = X+24
    for r in range(4):
        k(f"v_cvt_pk_bf16_f32 v{OP+r}, v{O+r}, v{O+4+r}")
    nstamp(k, opt, "d")
    k(f"ds_write_b128 v{aOXw}, {v(OP,4)}")
    tw = k.ds_tag()
    OF = [OP, VXC, VXC+4, X+28]
    def op(pr, i):
        B = a(wo_areg(pr, i), 8) if (pr, i) in WO_A else v(ZS[(pr, i)], 8)
        k(f"{SM} {v(Y+4*pr,4)}, {v(OF[i],4)}, {B}, v{vIDX}")
    CH = {2: VA, 0: VA+2, 3: VA+4, 1: VA+6}
    def f(pr, hf): cvt(CH[pr] + hf, Y + 4*pr + 2*hf, Y + 4*pr + 2*hf + 1)
    def pst(sg): k(f"buffer_store_dwordx4 {v(VA+4*sg,4)}, v{gPART}, {ws}, s{sPST+sg} offen {st}")
    k(f"v_xor_b32 v{SS+1}, {1<<9}, v{aOXw}")
    op(2, 0); k(f"v_xor_b32 v{SS+2}, {2<<9}, v{aOXw}"); k(f"s_add_u32 s{sKo}, s{sKo}, 8192")
    op(0, 0); k(f"v_xor_b32 v{SS+3}, {3<<9}, v{aOXw}")
    op(3, 0); k(f"s_add_u32 s{sMEM}, s{sMEM}, 8192")
    op(1, 0); k(f"s_add_u32 s{sVMo}, s{sVMo}, {KMVM_BLK}")
    k.wait_ds(tw)
    k("s_barrier")
    stamp(k, opt, 3)
    to = {}
    for i in range(1, 4):
        k(f"ds_read_b128 {v(OF[i],4)}, v{SS+i}"); to[i] = k.ds_tag()
    for h_ in range(4): rdw(X + 4*h_, wo_lds(0, 2 + (h_ >> 1)) + (h_ & 1)*1024)
    tx = k.ds_tag()
    k(f"v_mov_b32 v{SS+8}, s{sS}")
    k(f"v_xor_b32 v{aKXL}, 0x2000, v{aKXL}")
    k(f"v_xor_b32 v{SS+9}, 16, v{aQXw}")
    k.wait_ds(to[1])
    nstamp(k, opt, "e")
    op(2, 1)
    op(0, 1); k.wait_ds(to[2])
    op(2, 2); rdw(ZN, wo_lds(1, 2)); k.wait_ds(tx)
    op(0, 2); rdw(ZN+4, wo_lds(1, 2) + 1024)
    op(2, 3); rdw(ZN+8, wo_lds(1, 3))
    op(0, 3); rdw(ZN+12, wo_lds(1, 3) + 1024); tj = k.ds_tag()
    op(3, 1); k(f"v_xor_b32 v{SS+1}, {1<<11}, v{aMEM0}")
    op(1, 1); k(f"v_xor_b32 v{SS+2}, {2<<11}, v{aMEM0}")
    op(3, 2); k.wait_ds(tj); f(2, 0); f(2, 1); f(0, 0); f(0, 1)
    k(f"v_bfi_b32 v{VA}, 1, s{sTAG}, v{VA}")
    op(1, 2); pst(0)
    op(3, 3); k(f"v_xor_b32 v{SS+3}, {3<<11}, v{aMEM0}")
    op(1, 3); nstamp(k, opt, "f")
    k(f"ds_read_b128 {v(SS+4,4)}, v{aL} offset:{L_SEL - L_KX}"); tsel = k.ds_tag()
    for hh in range(4): rdw(ZN + 16 + hh*4, qk_lds(2, 2 + (hh >> 1)) + (hh & 1)*1024)
    k(f"s_xor_b32 s{sM0}, s{sM0}, 0x2000")
    f(3, 0); f(3, 1)
    k(f"v_bfi_b32 v{VA+4}, 1, s{sTAG}, v{VA+4}")
    f(1, 0); f(1, 1)
    pst(1)
    stamp(k, opt, 4)
    R = X+16; D = X+8
    def pollB():
        for i in range(2):
            k(f"buffer_load_dwordx4 {v(R+4*i,4)}, v{aL}, {ws}, s{sPRD} offen offset:{i*1024} sc1")
    for T in range(2):
        for hh in range(2): rdw(ZN + T*8 + hh*4, qk_lds(2, T) + hh*1024)
    k(f"s_mov_b32 s{sSPIN}, {SPIN_LIMIT}")
    k(f"s_add_u32 s{sVo}, s{sVo}, 8192")
    k(f"s_add_u32 s{sQKo}, s{sQKo}, {KMVM_BLK}")
    if opt.get("earlyB") and not st:
        lab = k.label("L_eb")
        k(f"s_bitcmp0_b32 s{sJ}, 0")
        k(f"s_cbranch_scc1 {lab}")
        k.nop(opt["earlyB"])
        k(f"{lab}:")
        k.nop(opt.get("delayB", 0) - opt["earlyB"])
    else:
        k.nop(opt.get("delayBs" if st else "delayB", 0))
    pollB()
    for i in range(4): zero2(VA+2*i)
    for i in range(8): zero2(Y+2*i)
    k.wait_vm(tvx)
    for i in range(4): k(f"v_mov_b64 {v(VXC+2*i,2)}, {v(VXN+2*i,2)}")
    k.wait_ds(tsel)
    k(f"s_branch {okB}")
    k(".p2align 6")
    k(f"{retB}:")
    k("s_mov_b64 exec, vcc"); pollB(); k("s_mov_b64 exec, -1")
    if opt.get("cnt"): k("s_add_u32 s82, s82, 1")
    k(f"s_sub_u32 s{sSPIN}, s{sSPIN}, 1")
    k(f"s_cbranch_scc1 {fail}")
    k(f"{okB}:")
    if not opt.get("nowait"): k("s_waitcnt vmcnt(0)")
    k(f"v_bitop3_b32 v{SS}, v{R}, v{R+4}, s{sTAG} bitop3:{hex(BITOP)}")
    k(f"{MF} {v(D,4)}, {v(SS+4,4)}, {v(R,4)}, 0")
    k(f"v_and_b32 v{SS}, 1, v{SS}")
    k(f"{MF} {v(D,4)}, {v(SS+4,4)}, {v(R+4,4)}, {v(D,4)}")
    k(f"v_cmp_ne_u32 vcc, 0, v{SS}")
    if not opt.get("nocheck"): k(f"s_cbranch_vccnz {retB}")
    stamp(k, opt, 5)
    k(f"s_mov_b32 s{sSPIN}, {SPIN_LIMIT}")
    k(f"v_readlane_b32 s{sKC}, v{vJNK}, 0")
    k(f"v_readlane_b32 s{sT1}, v{vJNK}, 1")
    k(f"s_xor_b32 s{sTAG}, s{sTAG}, 1")
    k(f"s_add_u32 s{sNEED}, s{sS}, 2")
    k(f"s_min_u32 s{sNEED}, s{sNEED}, 64")
    k(f"v_add_f32_dpp v{D}, v{D}, v{D} row_ror:4 row_mask:0xf bank_mask:0xf")
    k(f"v_add_f32_dpp v{D+1}, v{D+1}, v{D+1} row_ror:4 row_mask:0xf bank_mask:0xf")
    k("s_nop 0")
    k(f"v_add_f32_dpp v{D}, v{D}, v{D} row_ror:8 row_mask:0xf bank_mask:0xf")
    k(f"v_add_f32_dpp v{D+1}, v{D+1}, v{D+1} row_ror:8 row_mask:0xf bank_mask:0xf")
    k(f"s_mov_b64 exec, s[{sMASK}:{sMASK+1}]")
    cvt(SS, D, D+1)
    k(f"v_min_u32 v{SS}, -2, v{SS}")
    k(f"buffer_store_dword v{SS}, v{gPUB}, {ws}, s{sPUB} offen {st}")
    k("s_mov_b64 exec, -1")
    stamp(k, opt, 6)
    k(f"s_add_u32 s{sPUB}, s{sPUB}, 8192")
    k(f"s_min_u32 s{sKC}, s{sKC}, s{sT1}")
    k.nop(opt.get("delayAs" if st else "delayA", 0))
    pollA()
    k("s_waitcnt lgkmcnt(0)")
    k(f"s_cmp_lt_u32 s{sS}, s{sEND}")
    k(f"s_cbranch_scc1 {top}")
    if st and opt.get("nb", 0):
        k(f"s_cmp_lg_u32 s{sROLE}, 0")
        k("s_cbranch_scc1 L_chain_b_done")
    top2 = k.label("L_fin"); retA2 = k.label("L_retA2")
    front(True, top2, retA2)
    for l in range(2, 8):
        for T in range(2): vp(l, T)
    k.nop(8)
    for e in range(4): add(VA+e, VA+(e&1)+4*(e>>1), VA+2+(e&1)+4*(e>>1))
    cvt(VA+4, VA, VA+1); cvt(VA+5, VA+2, VA+3)
    k(f"buffer_store_dwordx4 {v(VA+4,4)}, v{aL}, {ws}, s{sVMo} offen sc1")
    k(f"v_mov_b32 v{SS+8}, 64")
    k("s_waitcnt vmcnt(0)")
    k(f"buffer_store_dword v{SS+8}, off, {ws}, s{sFCH} sc1")
    k(f"s_branch {done}")
    k(f"{kvs}:")
    kv_poll(k, fail)
    k(f"s_branch {kvb}")

def emit_chain(k, opt, fail):
    emit_setup(k, opt, fail)
    slow = k.label("L_slow"); done = k.label("L_chdone")
    if opt.get("force_slow"): k(f"s_mov_b32 s{sFAST}, 0")
    k("L_chain_loops:")
    k(f"s_cmp_eq_u32 s{sFAST}, 0")
    k(f"s_cbranch_scc1 {slow}")
    emit_loop(k, opt, fail, done, "")
    k(f"{slow}:")
    emit_loop(k, opt, fail, done, "sc1")
    k(f"{done}:")
    if opt.get("trace"):
        k("s_waitcnt lgkmcnt(0)")
        k("s_barrier")
        k(f"ds_read_b128 v[4:7], v{aL} offset:0x7c00")
        k(f"s_lshl_b32 s32, s{sJ}, 10")
        k(f"s_add_u32 s32, s32, {hex(DIAG + 0x10000 - L_KX + 0x100000)}")
        k("s_waitcnt lgkmcnt(0)")
        k(f"s_sub_u32 s32, s32, 0x100000")
        k(f"buffer_store_dwordx4 v[4:7], v{aL}, s[{S_WS}:{S_WS+3}], s32 offen")
    if opt.get("dbgstamp"):
        import gen; gen.wg_stamp(k, 2, 4)
    if opt.get("diag"):
        k("s_memtime s[86:87]")
        k("s_memrealtime s[88:89]")
        k("s_waitcnt lgkmcnt(0)")
        k(f"s_lshl_b32 s32, s{sJ}, 2")
        k(f"s_add_u32 s32, s32, s{sW}")
        k("s_lshl_b32 s32, s32, 7")
        k(f"s_add_u32 s32, s32, {hex(DIAG)}")
        k("v_mov_b32 v5, 0")
        k("s_mov_b64 exec, 1")
        for i in range(13):
            k(f"v_mov_b32 v4, s{64+2*i}")
            k(f"buffer_store_dword v4, v5, s[{S_WS}:{S_WS+3}], s32 offen offset:{4*i}")
        k("v_mov_b32 v4, s90")
        k(f"buffer_store_dword v4, v5, s[{S_WS}:{S_WS+3}], s32 offen offset:56")
        k(f"v_mov_b32 v4, s{sFAST}")
        k(f"buffer_store_dword v4, v5, s[{S_WS}:{S_WS+3}], s32 offen offset:52")
    k("s_endpgm")
    if opt.get("nb", 0):
        k("L_chain_b_done:")
        k("s_waitcnt vmcnt(0) lgkmcnt(0)")
        k("s_barrier")
        if opt.get("diag"):
            import gen; gen.wg_stamp(k, 5, 4)
            k("s_load_dwordx16 s[64:79], s[0:1], 0")
            k("s_load_dwordx16 s[80:95], s[0:1], 64")
            k("s_waitcnt lgkmcnt(0)")
        k("v_mbcnt_lo_u32_b32 v0, -1, 0")
        k("v_mbcnt_hi_u32_b32 v0, -1, v0")
        k("s_branch L_w2" if "w2" in opt["roles"] else "s_endpgm")
```

```python
from asmlib import *
KNAME = "concat_heads__ssm_conv_s5__memory_aug_recurrent_mem_tr__prompt_kernel"
WS_BYTES = 0x10000000
F_KV   = 0x0000000
F_CH   = 0x0004000
F_W2   = 0x0006000
F_A    = 0x0007000
DIAG   = 0x0010000
MEMB   = 0x0100000
PART   = 0x0200000
KMVM   = 0x5000000
KMVM_BLK = 8192
KX     = 0x1000000
VX     = 0x2000000
W2P    = 0x3000000
HBUF   = 0x4000000
S_WS, S_A, S_B, S_DBG, S_C, S_D = 4, 8, 12, 16, 20, 24
sW, sJ, sG, sXCC = 28, 29, 30, 31
P_AX, P_LRE, P_LIM, P_BRE, P_BIM, P_CRE, P_CIM, P_LOGDT = 64, 66, 68, 70, 72, 74, 76, 78
P_DSKIP, P_BX, P_MEM0, P_WQ, P_WK, P_WV, P_WO, P_SEG = 80, 82, 84, 86, 88, 90, 92, 94
P_OUT, P_DBG, P_WS = 96, 98, 100
SPIN_LIMIT = 0x40000

def srd(k, dst, ptr, nbytes):
    k(f"s_mov_b32 s{dst}, s{ptr}")
    k(f"s_and_b32 s{dst+1}, s{ptr+1}, 0xffff")
    k(f"s_mov_b32 s{dst+2}, {hex(nbytes)}")
    k(f"s_mov_b32 s{dst+3}, 0x20000")

def arrive(k, vt, sgrp=None):
    k("s_barrier")
    skip = k.label("L_arr")
    k(f"s_cmp_lg_u32 s{sW}, 0")
    k(f"s_cbranch_scc1 {skip}")
    k(f"s_mul_i32 s32, s{sXCC}, 6")
    k("s_lshl_b64 s[34:35], 1, s32")
    k("s_or_b32 s35, s35, 0x01000000")
    k(f"s_lshl_b32 s32, s{sG if sgrp is None else sgrp}, 3")
    k(f"v_mov_b32 v{vt}, s34")
    k(f"v_mov_b32 v{vt+1}, s35")
    k(f"v_mov_b32 v{vt+2}, s32")
    k("s_mov_b64 s[36:37], exec")
    k("s_mov_b64 exec, 1")
    k(f"buffer_atomic_add_x2 v[{vt}:{vt+1}], v{vt+2}, s[{S_DBG}:{S_DBG+3}], 0 offen offset:128")
    k("s_mov_b64 exec, s[36:37]")
    k(f"{skip}:")

def wait_arrivals(k, vt, groups_mask, s_fast, fail, sgrp=None):
    loop = k.label("L_wa")
    k(f"v_mbcnt_lo_u32_b32 v{vt+2}, -1, 0")
    k(f"v_mbcnt_hi_u32_b32 v{vt+2}, -1, v{vt+2}")
    k(f"v_and_b32 v{vt+2}, 15, v{vt+2}")
    k(f"v_lshlrev_b32 v{vt+2}, 3, v{vt+2}")
    k("s_mov_b32 s32, 0")
    k(f"{loop}:")
    k(f"buffer_load_dwordx2 v[{vt}:{vt+1}], v{vt+2}, s[{S_DBG}:{S_DBG+3}], 0 offen offset:128 sc1")
    k("s_add_u32 s32, s32, 1")
    k(f"s_cmp_gt_u32 s32, {SPIN_LIMIT}")
    k(f"s_cbranch_scc1 {fail}")
    k("s_waitcnt vmcnt(0)")
    k(f"v_lshrrev_b32 v{vt+3}, 24, v{vt+1}")
    k(f"v_cmp_ne_u32 vcc, 32, v{vt+3}")
    k(f"s_and_b32 s33, vcc_lo, {groups_mask}")
    k("s_cmp_lg_u32 s33, 0")
    k(f"s_cbranch_scc1 {loop}")
    k("s_nop 3")
    k(f"v_readlane_b32 s34, v{vt}, s{sG if sgrp is None else sgrp}")
    k(f"v_readlane_b32 s35, v{vt+1}, s{sG if sgrp is None else sgrp}")
    k(f"s_mul_i32 s32, s{sXCC}, 6")
    k("s_lshl_b64 s[36:37], 32, s32")
    k("s_or_b32 s37, s37, 0x20000000")
    k("s_cmp_eq_u64 s[34:35], s[36:37]")
    k(f"s_cselect_b32 s{s_fast}, 1, 0")

MF = "v_mfma_f32_16x16x32_bf16"
def lane_split(k, LN, C_, G_):
    k(f"v_and_b32 v{LN}, 63, v0")
    k(f"v_and_b32 v{C_}, 15, v{LN}")
    k(f"v_lshrrev_b32 v{G_}, 4, v{LN}")

def xdma_addr(k, dst, LN, t1, t2, rowbytes_log2=10):
    k(f"v_lshrrev_b32 v{t1}, 4, v{LN}")
    k(f"v_and_b32 v{t2}, 7, v{LN}")
    k(f"v_xor_b32 v{t1}, v{t1}, v{t2}")
    k(f"s_and_b32 s32, s{sW}, 1")
    k("s_lshl_b32 s32, s32, 2")
    k(f"v_xor_b32 v{t1}, s32, v{t1}")
    k(f"v_lshlrev_b32 v{t1}, 4, v{t1}")
    k(f"v_lshrrev_b32 v{t2}, 3, v{LN}")
    k(f"v_lshl_add_u32 v{t1}, v{t2}, {rowbytes_log2}, v{t1}")
    k(f"s_lshl_b32 s32, s{sW}, {3 + rowbytes_log2}")
    k(f"v_add_u32 v{dst}, s32, v{t1}")

def xfrag_addr(k, d0, d1, C_, G_, t1, t2):
    k(f"v_lshrrev_b32 v{t1}, 1, v{C_}")
    k(f"v_xor_b32 v{t1}, v{t1}, v{G_}")
    k(f"v_lshlrev_b32 v{t1}, 4, v{t1}")
    k(f"v_lshl_add_u32 v{d0}, v{C_}, 7, v{t1}")
    k(f"v_xor_b32 v{d1}, 64, v{d0}")

def w_loader(k, srd_, voff, dst_fmt, nt, land, tmp, sel_lo, sel_hi, first_hook=None):
    NG, D = 16, 6
    tags = {}
    for gi in range(NG + D - 1):
        if gi < NG:
            b = land + (gi % D) * 8
            for jd in range(4):
                for p in range(2):
                    k(f"s_mov_b32 s33, {(32*gi + 2*jd + p) * 8192}")
                    k(f"buffer_load_dword v{b + jd*2 + p}, v{voff}, s[{srd_}:{srd_+3}], s33 offen {nt}")
            tags[gi] = k.vm_tag()
        if gi == D - 2 and first_hook: first_hook()
        gp = gi - (D - 1)
        if gp >= 0:
            n = k.vm_seq - tags[gp] - (1 if (first_hook and gp <= D - 2) else 0)
            k(f"s_waitcnt vmcnt({max(n, 0)})")
            b = land + (gp % D) * 8
            for jd in range(4):
                for T in range(2):
                    kind, idx = dst_fmt(gp, T, jd)
                    d = idx if kind == 'v' else tmp + T
                    k(f"v_perm_b32 v{d}, v{b + jd*2 + 1}, v{b + jd*2}, s{sel_hi if T else sel_lo}")
                for T in range(2):
                    kind, idx = dst_fmt(gp, T, jd)
                    if kind == 'a': k(f"v_accvgpr_write_b32 a{idx}, v{tmp + T}")
```

```python
from common import *
import math, struct
NG2 = 4
L_EX = 0x10000
L_QO, L_OO = 0, 0x2000
aDMA, aX0, aX1, aL, aKM, gPART, gOUT, vNEG = 1, 2, 3, 4, 5, 6, 7, 8
SEL, XF, QA, PK, QF, KXF, VXF, KMF, VMF = 12, 16, 48, 64, 72, 88, 120, 136, 152
SS, P, O, OF, ACC, R = 160, 172, 180, 196, 16, 88
T0 = 228
sS, sT, sXo, sM0, sKo, sKMo, sPST, sPRD, sOUT, sTAG, sKC, sCC, sFKV, sFCH, sFAST, sSPIN, sT0, sSELLO, sSELHI = range(38, 57)
sC = 58; sMK = 64
BITOP = 0x7e
def wq(kap, T): return (kap*2 + T)*4
def wo(T, e): return 128 + (T*4 + e)*4

def poll_flag(k, fail, loads, nreg, scache, sneed):
    ok = k.label("L_fok"); loop = k.label("L_fp")
    k(f"s_cmp_ge_u32 s{scache}, s{sneed}")
    k(f"s_cbranch_scc1 {ok}")
    k(f"s_mov_b32 s{sSPIN}, {SPIN_LIMIT}")
    k(f"{loop}:")
    for l in loads: k(l)
    k(f"s_sub_u32 s{sSPIN}, s{sSPIN}, 1")
    k(f"s_cbranch_scc1 {fail}")
    k("s_waitcnt vmcnt(0)")
    for i in range(1, nreg): k(f"v_min_u32 v{T0}, v{T0}, v{T0+i}")
    k("s_nop 0")
    k(f"v_readfirstlane_b32 s{scache}, v{T0}")
    k("s_nop 3")
    k(f"s_cmp_ge_u32 s{scache}, s{sneed}")
    k(f"s_cbranch_scc1 {ok}")
    k("s_sleep 2")
    k(f"s_branch {loop}")
    k(f"{ok}:")

def emit(k, opt, fail):
    ws = f"s[{S_WS}:{S_WS+3}]"
    k.c("================= attention / output projection role =================")
    srd(k, S_A, P_WQ, 512*8192)
    srd(k, S_B, P_BX, 2048*1024)
    srd(k, S_C, P_OUT, 2048*4096)
    srd(k, S_D, P_WO, 32*131072)
    k(f"s_mov_b32 s{sSELLO}, 0x05040100")
    k(f"s_mov_b32 s{sSELHI}, 0x07060302")
    cb = struct.unpack("<I", struct.pack("<f", 128 ** -0.5 * math.log2(math.e)))[0]
    k(f"s_mov_b32 s{sC}, {hex(cb)}")
    k(f"s_mov_b32 s{sC+1}, {hex(cb)}")
    LN, C_, G_, t1, t2, oW, oWO = 240, 241, 242, 243, 244, 245, 246
    lane_split(k, LN, C_, G_)
    xdma_addr(k, aDMA, LN, t1, t2)
    xfrag_addr(k, aX0, aX1, C_, G_, t1, t2)
    k(f"v_lshlrev_b32 v{aL}, 4, v{LN}")
    k(f"v_mov_b32 v{vNEG}, 0xff000000")
    k(f"v_lshlrev_b32 v{t1}, 16, v{G_}")
    k(f"v_lshl_add_u32 v{t1}, v{C_}, 2, v{t1}")
    k(f"s_lshl_b32 s32, s{sJ}, 8")
    k(f"s_lshl_b32 s33, s{sW}, 6")
    k("s_add_u32 s32, s32, s33")
    k(f"v_add_u32 v{oW}, s32, v{t1}")
    k(f"v_lshlrev_b32 v{t1}, 13, v{G_}")
    k(f"v_lshl_add_u32 v{t1}, v{C_}, 4, v{t1}")
    k(f"s_lshl_b32 s32, s{sJ}, 17")
    k(f"s_lshl_b32 s33, s{sW}, 8")
    k("s_add_u32 s32, s32, s33")
    k(f"v_add_u32 v{oWO}, s32, v{t1}")
    k(f"v_lshrrev_b32 v{t1}, 2, v{C_}")
    k(f"v_lshlrev_b32 v{t1}, 8, v{t1}")
    k(f"v_lshl_add_u32 v{t1}, v{G_}, 5, v{t1}")
    k(f"v_and_b32 v{t2}, 1, v{C_}")
    k(f"v_lshl_add_u32 v{t1}, v{t2}, 3, v{t1}")
    k(f"v_add_u32 v{aKM}, 2048, v{t1}")
    k(f"v_lshlrev_b32 v{t1}, 16, v{G_}")
    k(f"v_lshl_add_u32 v{t1}, v{C_}, 4, v{t1}")
    k(f"s_lshl_b32 s32, s{sW}, 18")
    k(f"s_lshl_b32 s33, s{sJ}, 8")
    k("s_add_u32 s32, s32, s33")
    k(f"v_add_u32 v{gPART}, s32, v{t1}")
    k(f"v_lshlrev_b32 v{t1}, 12, v{C_}")
    k(f"v_lshl_add_u32 v{gOUT}, v{G_}, 4, v{t1}")
    k(f"v_and_b32 v{t2}, 1, v{C_}")
    k(f"v_lshlrev_b32 v{t2}, 4, v{t2}")
    k(f"v_mov_b32 v{t1}, 0x3f80")
    k(f"v_lshlrev_b32 v{t2}, v{t2}, v{t1}")
    k(f"v_lshrrev_b32 v{t1}, 1, v{C_}")
    for i in range(4):
        k(f"v_cmp_eq_u32 vcc, {i}, v{t1}")
        k("s_nop 1")
        k(f"v_cndmask_b32 v{SEL+i}, 0, v{t2}, vcc")
    k(f"s_sub_u32 s{sS}, s{sG}, 3")
    k(f"s_lshl_b32 s32, s{sS}, 21")
    k(f"s_add_u32 s{sPST}, s32, {hex(W2P)}")
    k(f"s_lshl_b32 s32, s{sJ}, 15")
    k(f"s_lshl_b32 s33, s{sW}, 13")
    k("s_add_u32 s32, s32, s33")
    k(f"s_add_u32 s{sPRD}, s{sPST}, s32")
    k(f"s_lshl_b32 s32, s{sJ}, 19")
    k(f"s_lshl_b32 s33, s{sS}, 13")
    k("s_add_u32 s32, s32, s33")
    k(f"s_add_u32 s{sKo}, s32, {hex(KX)}")
    k(f"s_add_u32 s{sKMo}, s32, {hex(KMVM)}")
    k(f"s_lshl_b32 s32, s{sJ}, 8")
    k(f"s_add_u32 s{sFKV}, s32, {hex(F_KV)}")
    k(f"s_add_u32 s{sFCH}, s32, {hex(F_CH)}")
    k(f"s_lshl_b32 s32, s{sS}, 17")
    k(f"s_and_b32 s33, s{sJ}, 1")
    k("s_lshl_b32 s33, s33, 16")
    k("s_add_u32 s32, s32, s33")
    k(f"s_lshr_b32 s33, s{sJ}, 1")
    k("s_lshl_b32 s33, s33, 7")
    k("s_add_u32 s32, s32, s33")
    k(f"s_lshl_b32 s33, s{sW}, 5")
    k("s_add_u32 s32, s32, s33")
    k(f"s_add_u32 s{sOUT}, s32, 2048")
    for i in range(4): k(f"v_mov_b32 v{T0+i}, -1")
    for sl in range(2):
        for hf in range(2):
            k(f"s_add_u32 s33, s{sPRD}, {sl*0x100000 + hf*4096}")
            for i in range(4):
                k(f"buffer_store_dwordx4 {v(T0,4)}, v{aL}, {ws}, s33 offen offset:{i*1024} sc1")
    ft = k.vm_tag()
    def dma():
        for kp in range(8):
            k(f"s_add_u32 m0, s{sM0}, {kp*4096}")
            k(f"s_add_u32 s{sT0}, s{sXo}, {kp*128}")
            k(f"buffer_load_dwordx4 v{aDMA}, s[{S_B}:{S_B+3}], s{sT0} offen lds")
        k(f"s_add_u32 s{sXo}, s{sXo}, {NG2*32768}")
        k(f"s_xor_b32 s{sM0}, s{sM0}, 0x8000")
    k(f"s_lshl_b32 s{sXo}, s{sS}, 15")
    k(f"s_lshl_b32 s{sM0}, s{sW}, 10")
    dma()
    def hook():
        k.wait_vm(ft); arrive(k, T0+4)
    nt = opt.get("wflags", "")
    w_loader(k, S_A, oW, lambda kap, T, jd: ('a', wq(kap, T) + jd), nt, 16, T0+4, sSELLO, sSELHI, hook)
    tags = {}
    for gi in range(4 + 2):
        if gi < 4:
            b = 16 + (gi % 3)*32
            for jd in range(4):
                for p in range(2):
                    k(f"s_mov_b32 s33, {(32*gi + 2*jd + p) * 1024}")
                    k(f"buffer_load_dwordx4 {v(b + jd*8 + p*4, 4)}, v{oWO}, s[{S_D}:{S_D+3}], s33 offen {nt}")
            tags[gi] = k.vm_tag()
        gp = gi - 2
        if gp >= 0:
            k.wait_vm(tags[gp]); b = 16 + (gp % 3)*32
            for jd in range(4):
                for T in range(8):
                    k(f"v_perm_b32 v{T0+T}, v{b + jd*8 + 4 + (T>>1)}, v{b + jd*8 + (T>>1)}, s{sSELHI if T & 1 else sSELLO}")
                for T in range(8):
                    k(f"v_accvgpr_write_b32 a{wo(T, gp) + jd}, v{T0+T}")
    k(f"s_and_b32 s32, s{sW}, 1")
    k("s_lshl_b32 s32, s32, 4")
    k(f"v_add_u32 v{t1}, s32, v{C_}")
    k(f"v_lshlrev_b32 v{t2}, 2, v{G_}")
    k(f"v_sub_u32 v{t1}, v{t1}, v{t2}")
    wait_arrivals(k, T0, 0x7f, sFAST, fail)
    if opt.get("force_slow"): k(f"s_mov_b32 s{sFAST}, 0")
    for kt in range(2):
        for r in range(4):
            m = sMK + (kt*4 + r)*2
            k(f"v_cmp_le_i32 s[{m}:{m+1}], {16*kt + r}, v{t1}")
    aQ, aV, aOw, aQw = 9, 10, 11, T0+15
    k(f"s_and_b32 s32, s{sW}, 1")
    k("s_lshl_b32 s32, s32, 12")
    k(f"v_add_u32 v{aQ}, s32, v{aL}")
    k(f"s_lshr_b32 s33, s{sW}, 1")
    k("s_lshl_b32 s34, s33, 12")
    k(f"v_add_u32 v{aV}, s34, v{aL}")
    k(f"s_lshl_b32 s34, s33, 11")
    k(f"v_add_u32 v{aOw}, s34, v{aQ}")
    k(f"s_lshl_b32 s32, s{sW}, 10")
    k(f"v_add_u32 v{aQw}, s32, v{aL}")
    aVM = T0+14
    k(f"v_add_u32 v{aVM}, s34, v{aL}")
    aOr = T0+13
    for r_ in (aQ, aOw, aQw): k(f"v_add_u32 v{r_}, {hex(L_EX)}, v{r_}")
    k(f"v_add_u32 v{aOr}, {hex(L_EX)}, v{aL}")
    k(f"s_mov_b32 s{sT}, 0")
    k(f"s_mov_b32 s{sTAG}, 0")
    k(f"s_mov_b32 s{sKC}, 0")
    k(f"s_mov_b32 s{sCC}, 0")
    top = k.label("L_w2top")
    k(".p2align 6")
    k(f"{top}:")
    k("s_waitcnt vmcnt(0)")
    k("s_barrier")
    dma()
    k(f"s_add_u32 s{sT0+0}, s{sS}, 1")
    k(f"s_mov_b32 s34, s{sT0}")
    poll_flag(k, fail, [f"buffer_load_dwordx2 {v(T0,2)}, off, {ws}, s{sFKV} sc1"], 2, sKC, 34)
    k(f"s_add_u32 s32, s{sKo}, 4096")
    k(f"s_add_u32 s33, s{sKo}, {hex(VX - KX)}")
    for i in range(8):
        k(f"buffer_load_dwordx4 {v(KXF + 4*i, 4)}, v{aL}, {ws}, s{sKo if i < 4 else 32} offen offset:{(i & 3)*1024} sc1")
    for i in range(4):
        k(f"buffer_load_dwordx4 {v(VXF + 4*i, 4)}, v{aV}, {ws}, s33 offen offset:{i*1024} sc1")
    def rd(i):
        kap, rt = i >> 1, i & 1
        k(f"ds_read_b128 {v(XF + (i % 8)*4, 4)}, v{aX1 if kap & 1 else aX0} offset:{(kap >> 1)*4096 + rt*2048}")
        return k.ds_tag()
    tg = {}
    for i in range(6): tg[i] = rd(i)
    for kap in range(16):
        k.wait_ds(tg[2*kap + 1])
        for rt in range(2):
            for T in range(2):
                acc = v(QA + (rt*2 + T)*4, 4)
                k(f"{MF} {acc}, {a(wq(kap, T), 4)}, {v(XF + ((2*kap + rt) % 8)*4, 4)}, {'0' if kap == 0 else acc}")
                j = 2*kap + 6 + rt
                if T == 0 and j < 32: tg[j] = rd(j)
    k(f"v_xor_b32 v{aX0}, 0x8000, v{aX0}")
    k(f"v_xor_b32 v{aX1}, 0x8000, v{aX1}")
    k.nop(6)
    for u in range(2):
        for r in range(4):
            k(f"v_cvt_pk_bf16_f32 v{PK + u*4 + r}, v{QA + u*8 + r}, v{QA + u*8 + 4 + r}")
        k(f"ds_write_b128 v{aQw}, {v(PK + u*4, 4)} offset:{L_QO + u*4096}")
    k("s_waitcnt lgkmcnt(0)")
    k("s_barrier")
    for e in range(4):
        k(f"ds_read_b128 {v(QF + 4*e, 4)}, v{aQ} offset:{L_QO + e*1024}")
    k("s_waitcnt lgkmcnt(0) vmcnt(0)")
    S0, S1, SM_ = SS, SS+4, SS+8
    for kt in range(2):
        for e in range(4):
            acc = v(SS + 4*kt, 4)
            k(f"{MF} {acc}, {v(KXF + (kt*4 + e)*4, 4)}, {v(QF + 4*e, 4)}, {'0' if e == 0 else acc}")
    k(f"s_add_u32 s34, s{sS}, 1")
    poll_flag(k, fail, [f"buffer_load_dwordx4 {v(T0,4)}, off, {ws}, s{sFCH} sc1"], 4, sCC, 34)
    for e in range(4):
        for hf in range(2):
            k(f"buffer_load_dwordx2 {v(KMF + 4*e + 2*hf, 2)}, v{aKM}, {ws}, s{sKMo} offen offset:{(e >> 1)*1024 + (e & 1)*128 + hf*16} sc1")
    k(f"s_add_u32 s32, s{sKMo}, 4096")
    for i in range(2):
        k(f"buffer_load_dwordx2 {v(VMF + 4*i, 2)}, v{aVM}, {ws}, s32 offen offset:{i*1024} sc1")
    k.nop(4)
    for i in range(8):
        k(f"v_cndmask_b32 v{SS+i}, v{vNEG}, v{SS+i}, s[{sMK+2*i}:{sMK+2*i+1}]")
    mx, t2_, nm, l0, l1 = T0, T0+1, T0+2, T0+4, T0+5
    k(f"v_max3_f32 v{mx}, v{S0}, v{S0+1}, v{S0+2}")
    k(f"v_max3_f32 v{mx}, v{mx}, v{S0+3}, v{S1}")
    k(f"v_max3_f32 v{mx}, v{mx}, v{S1+1}, v{S1+2}")
    k(f"v_max_f32 v{mx}, v{mx}, v{S1+3}")
    k(f"v_mov_b32 v{P+5}, 0")
    k("s_waitcnt vmcnt(2)")
    for e in range(4):
        k(f"{MF} {v(SM_,4)}, {v(KMF + 4*e, 4)}, {v(QF + 4*e, 4)}, {'0' if e == 0 else v(SM_,4)}")
    k.nop(8)
    k(f"v_max3_f32 v{t2_}, v{mx}, v{SM_}, v{SM_+1}")
    k(f"v_max3_f32 v{mx}, v{mx}, v{SM_}, v{SM_+1}")
    k.nop(2)
    k(f"v_permlane16_swap_b32 v{mx}, v{t2_}")
    k(f"v_max_f32 v{nm}, v{mx}, v{t2_}")
    k(f"v_max_f32 v{mx}, v{mx}, v{t2_}")
    k.nop(2)
    k(f"v_permlane32_swap_b32 v{mx}, v{nm}")
    k(f"v_max_f32 v{mx}, v{mx}, v{nm}")
    k(f"v_mul_f32 v{nm}, s{sC}, v{mx}")
    for i in range(5):
        r = SS + 2*i
        k(f"v_pk_fma_f32 {v(r,2)}, {v(r,2)}, s[{sC}:{sC+1}], {v(nm,2)} op_sel_hi:[1,1,0] neg_lo:[0,0,1] neg_hi:[0,0,1]")
    for i in range(10): k(f"v_exp_f32 v{SS+i}, v{SS+i}")
    k("s_nop 0")
    for i in range(5): k(f"v_cvt_pk_bf16_f32 v{P+i}, v{SS+2*i}, v{SS+2*i+1}")
    k(f"v_pk_add_f32 {v(SS,2)}, {v(SS,2)}, {v(SS+2,2)}")
    k(f"v_pk_add_f32 {v(SS+4,2)}, {v(SS+4,2)}, {v(SS+6,2)}")
    k(f"v_pk_add_f32 {v(SS,2)}, {v(SS,2)}, {v(SS+8,2)}")
    k(f"v_pk_add_f32 {v(SS,2)}, {v(SS,2)}, {v(SS+4,2)}")
    k("s_waitcnt vmcnt(0)")
    for i in range(2):
        k(f"v_mov_b32 v{VMF + 4*i + 2}, v{VMF + 4*i + 1}")
        k(f"v_mov_b32 v{VMF + 4*i + 3}, v{VMF + 4*i}")
    for i in range(4):
        k(f"{MF} {v(O + 4*i, 4)}, {v(VXF + 4*i, 4)}, {v(P,4)}, 0")
    k(f"v_add_f32 v{l0}, v{SS}, v{SS+1}")
    k(f"v_add_f32 v{l1}, v{SS}, v{SS+1}")
    for i in range(4):
        k(f"v_mfma_f32_16x16x16_bf16 {v(O + 4*i, 4)}, {v(VMF + 2*i, 2)}, {v(P+4,2)}, {v(O + 4*i, 4)}")
    k(f"v_permlane16_swap_b32 v{l0}, v{l1}")
    k(f"v_add_f32 v{t2_}, v{l0}, v{l1}")
    k(f"v_add_f32 v{l1}, v{l0}, v{l1}")
    k.nop(2)
    k(f"v_permlane32_swap_b32 v{t2_}, v{l1}")
    k(f"v_add_f32 v{l0}, v{t2_}, v{l1}")
    k(f"v_rcp_f32 v{nm}, v{l0}")
    k.nop(2)
    for i in range(8):
        k(f"v_pk_mul_f32 {v(O+2*i,2)}, {v(O+2*i,2)}, {v(nm,2)} op_sel_hi:[1,0]")
    for u in range(2):
        for r in range(4):
            k(f"v_cvt_pk_bf16_f32 v{PK + u*4 + r}, v{O + u*8 + r}, v{O + u*8 + 4 + r}")
        k(f"ds_write_b128 v{aOw}, {v(PK + u*4, 4)} offset:{L_OO + u*1024}")
    k("s_waitcnt lgkmcnt(0)")
    k("s_barrier")
    to = {}
    for i in range(8):
        k(f"ds_read_b128 {v(OF + 4*i, 4)}, v{aOr} offset:{L_OO + i*1024}"); to[i] = k.ds_tag()
    def stores(qt):
        for r in range(4):
            b = SS if r & 1 else P
            for t_ in range(4):
                k(f"v_cvt_pk_bf16_f32 v{b + t_}, v{ACC + (qt*8 + 2*t_)*4 + r}, v{ACC + (qt*8 + 2*t_ + 1)*4 + r}")
            k(f"v_bfi_b32 v{b}, 1, s{sTAG}, v{b}")
            k(f"s_add_u32 s32, s{sPST}, {qt*32768 + r*8192}")
            sl = k.label("L_ps"); jn = k.label("L_pj")
            k(f"s_cmp_eq_u32 s{sFAST}, 0")
            k(f"s_cbranch_scc1 {sl}")
            k(f"buffer_store_dwordx4 {v(b,4)}, v{gPART}, {ws}, s32 offen")
            k(f"s_branch {jn}")
            k(f"{sl}:")
            k(f"buffer_store_dwordx4 {v(b,4)}, v{gPART}, {ws}, s32 offen sc1")
            k(f"{jn}:")
    for qt in range(2):
        k.wait_ds(to[qt*4 + 3])
        for T in range(8):
            for e in range(4):
                acc = v(ACC + (qt*8 + T)*4, 4)
                k(f"{MF} {acc}, {a(wo(T, e), 4)}, {v(OF + (qt*4 + e)*4, 4)}, {'0' if e == 0 else acc}")
            if qt == 1 and T == 1: stores(0)
    k.nop(8)
    stores(1)
    k(f"s_add_u32 s33, s{sPRD}, 4096")
    k(f"s_mov_b32 s{sSPIN}, {SPIN_LIMIT}")
    rl = k.label("L_w2red"); rok = k.label("L_w2rok")
    k(f"{rl}:")
    for i in range(8):
        k(f"buffer_load_dwordx4 {v(R + 4*i, 4)}, v{aL}, {ws}, s{sPRD if i < 4 else 33} offen offset:{(i & 3)*1024} sc1")
    k("s_mov_b64 exec, -1")
    k(f"s_sub_u32 s{sSPIN}, s{sSPIN}, 1")
    k(f"s_cbranch_scc1 {fail}")
    k("s_waitcnt vmcnt(0)")
    for i in range(4):
        k(f"v_bitop3_b32 v{T0+i}, v{R + 8*i}, v{R + 8*i + 4}, s{sTAG} bitop3:{hex(BITOP)}")
    k(f"v_or3_b32 v{T0}, v{T0}, v{T0+1}, v{T0+2}")
    k(f"v_or_b32 v{T0}, v{T0}, v{T0+3}")
    k(f"v_and_b32 v{T0}, 1, v{T0}")
    k(f"v_cmp_ne_u32 vcc, 0, v{T0}")
    k(f"s_cbranch_vccz {rok}")
    k("s_mov_b64 exec, vcc")
    k(f"s_branch {rl}")
    k(f"{rok}:")
    for i in range(8):
        k(f"{MF} {v(O,4)}, {v(SEL,4)}, {v(R + 4*i, 4)}, {'0' if i == 0 else v(O,4)}")
    k(f"s_xor_b32 s{sPST}, s{sPST}, 0x100000")
    k(f"s_xor_b32 s{sPRD}, s{sPRD}, 0x100000")
    k(f"s_add_u32 s{sT}, s{sT}, 1")
    k(f"s_lshr_b32 s{sTAG}, s{sT}, 1")
    k(f"s_and_b32 s{sTAG}, s{sTAG}, 1")
    k(f"s_add_u32 s{sS}, s{sS}, {NG2}")
    k(f"s_add_u32 s{sKo}, s{sKo}, {NG2*8192}")
    k(f"s_add_u32 s{sKMo}, s{sKMo}, {NG2*8192}")
    k("s_mov_b32 exec_hi, 0")
    k(f"buffer_store_dwordx4 {v(O,4)}, v{gOUT}, s[{S_C}:{S_C+3}], s{sOUT} offen")
    k("s_mov_b64 exec, -1")
    k(f"s_add_u32 s{sOUT}, s{sOUT}, {NG2*131072}")
    k(f"s_cmp_lt_u32 s{sS}, 64")
    k(f"s_cbranch_scc1 {top}")
    if opt.get("diag"):
        k("s_waitcnt vmcnt(0)")
        import gen; gen.wg_stamp(k, 2, T0)
    k("s_endpgm")
```

```python
import sys, json
from common import *
import chain
HEADER = open("concat_heads__ssm_conv_s5__memory_aug_recurrent_mem_tr__prompt.s.ref").read().split("; Override launch")[0]

DBGSTAMP = False
def wg_stamp(k, slot, vt=250):
    k("s_memrealtime s[32:33]")
    k("s_waitcnt lgkmcnt(0)")
    if DBGSTAMP:
        k(f"v_mov_b32 v{vt}, s32")
        k(f"s_min_u32 s34, s{sG}, 3")
        k(f"s_cmp_eq_u32 s{sG}, 7")
        k("s_cselect_b32 s34, 2, s34")
        k(f"s_cmp_eq_u32 s{sG}, 2")
        k("s_cselect_b32 s34, 1, s34")
        k("s_lshl_b32 s34, s34, 4")
        k(f"s_add_u32 s34, s34, {slot*4}")
        lab = k.label("L_ds")
        k(f"s_lshl_b32 s35, s{sJ}, 2")
        k(f"s_add_u32 s35, s35, s{sW}")
        k("s_cmp_lg_u32 s35, 68")
        k(f"s_cbranch_scc1 {lab}")
        k(f"buffer_store_dword v{vt}, off, s[{S_DBG}:{S_DBG+3}], s34")
        k(f"{lab}:")
        return
    k("s_lshl_b32 s34, s2, 6")
    k(f"s_add_u32 s34, s34, {hex(DIAG + 0x8000 + slot*4)}")
    k(f"v_mov_b32 v{vt}, s32")
    k(f"v_mov_b32 v{vt+1}, 0")
    k("s_mov_b64 s[36:37], exec")
    k("s_mov_b64 exec, 1")
    k(f"buffer_store_dword v{vt}, v{vt+1}, s[{S_WS}:{S_WS+3}], s34 offen")
    k("s_mov_b64 exec, s[36:37]")

def build(opt):
    global DBGSTAMP
    DBGSTAMP = bool(opt.get('dbgstamp'))
    import gen as _g; _g.DBGSTAMP = DBGSTAMP
    k = Asm()
    k(f"{KNAME}:")
    k("s_cmp_ge_u32 s2, 256")
    k("s_cbranch_scc1 L_exit")
    k("s_load_dwordx16 s[64:79], s[0:1], 0")
    k("s_load_dwordx16 s[80:95], s[0:1], 64")
    k("s_load_dwordx4 s[96:99], s[0:1], 128")
    k("s_load_dwordx2 s[100:101], s[0:1], 144")
    k("v_lshrrev_b32 v1, 6, v0")
    k(f"s_and_b32 s{sG}, s2, 7")
    k(f"s_lshr_b32 s{sJ}, s2, 3")
    k(f"v_readfirstlane_b32 s{sW}, v1")
    k(f"s_getreg_b32 s{sXCC}, hwreg(HW_REG_XCC_ID, 0, 4)")
    k(f"s_and_b32 s{sXCC}, s{sXCC}, 7")
    k("s_waitcnt lgkmcnt(0)")
    srd(k, S_WS, P_WS, WS_BYTES)
    srd(k, S_DBG, P_DBG, 256)
    if opt.get("diag"): wg_stamp(k, 0)
    if opt.get("codepf"):
        k("s_getpc_b64 s[32:33]")
        k("v_and_b32 v2, 63, v0")
        k("v_lshlrev_b32 v2, 7, v2")
        k(f"v_lshl_add_u32 v2, v1, 13, v2")
        for i in range(opt["codepf"]):
            k(f"v_add_u32 v3, {i*32768}, v2")
            k(f"global_load_dword v4, v3, s[32:33]")
    roles = opt.get("roles", ["chain"])
    k(f"s_mov_b32 s{chain.sROLE}, 0")
    k(f"s_cmp_eq_u32 s{sG}, 0")
    k("s_cbranch_scc1 L_chain" if "chain" in roles else "s_cbranch_scc1 L_exit")
    if opt.get("nb", 0):
        k(f"s_mov_b32 s{chain.sROLE}, 8")
        k(f"s_lshr_b32 s32, s{sJ}, 3")
        k("s_add_u32 s32, s32, 3")
        k(f"s_cmp_eq_u32 s32, s{sG}")
        k("s_cbranch_scc1 L_chain")
    if "kv" in roles:
        k(f"s_cmp_le_u32 s{sG}, 2")
        k("s_cbranch_scc1 L_kv")
    if "a" in roles:
        k(f"s_cmp_eq_u32 s{sG}, 7")
        k("s_cbranch_scc1 L_parta")
    if "w2" in roles:
        k(f"s_cmp_ge_u32 s{sG}, 3")
        k(f"s_cselect_b32 s32, 1, 0")
        k(f"s_cmp_le_u32 s{sG}, 6")
        k(f"s_cselect_b32 s32, s32, 0")
        k("s_cmp_eq_u32 s32, 1")
        k("s_cbranch_scc1 L_w2")
    k("L_exit:")
    k("s_endpgm")
    k("L_fail:")
    k("s_mov_b64 exec, 1")
    k("v_mov_b32 v4, 0xdead")
    k("v_mov_b32 v5, 252")
    k(f"buffer_store_dword v4, v5, s[{S_DBG}:{S_DBG+3}], 0 offen")
    k("s_endpgm")
    if "chain" in roles:
        k("L_chain:")
        chain.emit_chain(k, opt, "L_fail")
    if "kv" in roles:
        import kv
        k("L_kv:")
        kv.emit(k, opt, "L_fail")
    if "w2" in roles:
        import w2
        k("L_w2:")
        w2.emit(k, opt, "L_fail")
    if "a" in roles:
        import parta
        k("L_parta:")
        parta.emit(k, opt, "L_fail")
    out = HEADER
    out += "; Generated by a Python script (own work): persistent kernel, one workgroup per CU, roles chosen by workgroup id.\n"
    out += "; @launch grid=(256,1,1) block=(256,1,1) lds=163840\n"
    out += f""".amdgcn_target "amdgcn-amd-amdhsa--gfx950"
.text
.globl {KNAME}
.p2align 8
.type {KNAME},@function
"""
    body = k.text().replace(f"    {KNAME}:", f"{KNAME}:")
    if opt.get("noload"):
        import re
        body = re.sub(r"    buffer_load_dwordx4 v9[234], s\[\d+:\d+\], s33 offen\s+lds\n", "    s_nop 0\n    s_nop 0\n", body)
    out += body
    out += f""".section .rodata,"a"
.p2align 6
.amdhsa_kernel {KNAME}
  .amdhsa_next_free_vgpr 512
  .amdhsa_next_free_sgpr 102
  .amdhsa_accum_offset 256
  .amdhsa_group_segment_fixed_size 0
  .amdhsa_kernarg_size 152
  .amdhsa_user_sgpr_count 2
  .amdhsa_user_sgpr_kernarg_segment_ptr 1
  .amdhsa_system_sgpr_workgroup_id_x 1
.end_amdhsa_kernel
"""
    return out

if __name__ == "__main__":
    opt = json.loads(sys.argv[2]) if len(sys.argv) > 2 else {}
    open(sys.argv[1], "w").write(build(opt))
```
